```python
import torch

def _softmax(x, axis=-1):
    return torch.softmax(x, dim=axis)
def _gelu(x):
    return torch.nn.functional.gelu(x, approximate="tanh")
def _silu(x):
    return torch.nn.functional.silu(x)
def _sigmoid(x):
    return torch.sigmoid(x)
def _layernorm(x, axis=-1, eps=1e-5):
    m = x.mean(dim=axis, keepdim=True)
    v = x.var(dim=axis, keepdim=True, unbiased=False)
    return (x - m) / torch.sqrt(v + eps)
def _scatter_add(tgt, idx, src, axis=0):
    return tgt.clone().index_add_(axis, idx, src)
def _segment_sum(src, seg, n):
    out = torch.zeros((n,) + src.shape[1:], dtype=src.dtype)
    return out.index_add_(0, seg, src)
def _pad(x, pw):
    flat = tuple(v for pair in reversed(pw) for v in pair)
    return torch.nn.functional.pad(x, flat)

kernel_name = 'recurrent_scan__linear_kernel_hedgehog__dense_activation_mish__prompt'

def setup_inputs():

    _w = (lambda a: (lambda t: t.to(torch.bfloat16) if t.is_floating_point() else t)(torch.as_tensor(a)))
    def _A_setup():
        B, S, D, H = 1, 2048, 1024, 32
        Dh = D // H
        return {
            "x": _w((lambda *s: torch.randn(*s, dtype=torch.bfloat16) * 0.05)(B, S, D)),
            "wqkv": _w((lambda *s: torch.randn(*s, dtype=torch.bfloat16) * 0.2)(D, 3 * D)),
            "w_phi": _w((lambda *s: torch.randn(*s, dtype=torch.bfloat16) * 0.2)(H, Dh, Dh) * (Dh ** -0.5)),
            "wo": _w((lambda *s: torch.randn(*s, dtype=torch.bfloat16) * 0.2)(D, D)),
        }
    _A_in = _A_setup()

    def _B_setup():
        B, S, D, F = 1, 2048, 1024, 3584
        return {
            "x": _w((lambda *s: torch.randn(*s, dtype=torch.bfloat16) * 0.05)(B, S, D)),
            "w1": _w((lambda *s: torch.randn(*s, dtype=torch.bfloat16) * 0.4)(D, F) * (D ** -0.5)),
            "b1": _w((lambda *s: torch.randn(*s, dtype=torch.bfloat16) * 0.2)(F)),
            "w2": _w((lambda *s: torch.randn(*s, dtype=torch.bfloat16) * 0.1)(F, D) * (F ** -0.5)),
        }
    _B_in = _B_setup()

    return {
        "A_x": _A_in["x"],
        "A_wqkv": _A_in["wqkv"],
        "A_w_phi": _A_in["w_phi"],
        "A_wo": _A_in["wo"],
        "B_x": _B_in["x"],
        "B_w1": _B_in["w1"],
        "B_b1": _B_in["b1"],
        "B_w2": _B_in["w2"],
    }

def reference(A_x, A_wqkv, A_w_phi, A_wo, B_x, B_w1, B_b1, B_w2):
    def _A_ref(x, wqkv, w_phi, wo):
        B, S, D = x.shape
        H = 32; Dh = D // H
        qkv = (lambda x, *d: x.permute(*d))((x @ wqkv).reshape(B, S, 3, H, Dh), 2, 0, 3, 1, 4)
        q, k, v = qkv[0], qkv[1], qkv[2]
        pq = torch.einsum("bhsd,hdf->bhsf", q, w_phi)
        pk = torch.einsum("bhsd,hdf->bhsf", k, w_phi)
        phi_q = torch.concatenate([_softmax(pq, axis=-1), _softmax(-pq, axis=-1)], axis=-1)
        phi_k = torch.concatenate([_softmax(pk, axis=-1), _softmax(-pk, axis=-1)], axis=-1)
        kv = torch.einsum("bhsf,bhsd->bhfd", phi_k, v)
        z  = torch.einsum("bhsf->bhf", phi_k)
        num = torch.einsum("bhqf,bhfd->bhqd", phi_q, kv)
        den = torch.einsum("bhqf,bhf->bhq", phi_q, z)[..., None] + 1e-6
        o = num / den
        return (lambda x, *d: x.permute(*d))(o, 0, 2, 1, 3).reshape(B, S, D) @ wo

    def _B_ref(x, w1, b1, w2):
        h = torch.einsum("bsd,df->bsf", x, w1) + b1
        sp = torch.log1p(torch.exp(-torch.abs(h))) + torch.where(h > 0, h, torch.zeros_like(h))
        act = h * torch.tanh(sp)
        return torch.einsum("bsf,fd->bsd", act, w2)

    x = A_x
    xn = _layernorm(x, axis=-1)
    s = _A_ref(xn, A_wqkv, A_w_phi, A_wo)
    g = _silu(_B_ref(xn, B_w1, B_b1, B_w2))
    return x + s * g
```

```python
import re

TRANS = ('v_exp_f32', 'v_log_f32', 'v_rcp_f32', 'v_rsq_f32', 'v_sqrt_f32', 'v_sin_f32', 'v_cos_f32')

def regs_of(tok):
    tok = tok.strip()
    tok = tok.lstrip('-')
    if tok.startswith('abs(') or tok.startswith('|'):
        tok = tok.replace('abs(', '').replace(')', '').replace('|', '')
    m = re.fullmatch(r'([vsa])(\d+)', tok)
    if m: return {m.group(1) + m.group(2)}
    m = re.fullmatch(r'([vsa])\[(\d+):(\d+)\]', tok)
    if m: return {m.group(1) + str(i) for i in range(int(m.group(2)), int(m.group(3)) + 1)}
    if tok in ('vcc', 'vcc_lo', 'vcc_hi'): return {'vcc'}
    if tok in ('exec', 'exec_lo', 'exec_hi'): return {'exec'}
    if tok == 'm0': return {'m0'}
    return set()

class Ins:
    __slots__ = ('text', 'op', 'dst', 'src', 'kind', 'srcc', 'srcab', 'label', 'target', 'states', 'lds_dma', 'wide_store', 'data')
    def __init__(self, text):
        self.text = text; self.label = None; self.target = None
        self.dst = set(); self.src = set(); self.srcc = set(); self.srcab = set(); self.data = set()
        self.lds_dma = False; self.wide_store = False; self.states = 1
        t = text.split(';')[0].strip()
        if t.endswith(':'):
            self.label = t[:-1]; self.op = None; self.kind = 'label'; self.states = 0; return
        if t.startswith('.') or not t:
            self.op = None; self.kind = 'dir'; self.states = 0; return
        parts = t.split(None, 1)
        op = parts[0]; self.op = op
        rest = parts[1] if len(parts) > 1 else ''
        ops = []; depth = 0; cur = ''
        for ch in rest:
            if ch in '[(': depth += 1
            if ch in '])': depth -= 1
            if ch == ',' and depth == 0: ops.append(cur.strip()); cur = ''
            else: cur += ch
        if cur.strip(): ops.append(cur.strip())
        mods = ''
        if ops:
            last = ops[-1].split()
            ops[-1] = last[0]; mods = ' '.join(last[1:])
        base = re.sub(r'_(e32|e64|dpp|sdwa)$', '', op)
        R = [regs_of(o) for o in ops]
        if op.startswith('v_mfma'):
            self.kind = 'mfma'; self.dst = R[0]; self.srcab = R[1] | R[2]; self.srcc = R[3]; self.src = self.srcab | self.srcc
        elif op.startswith('v_'):
            self.kind = 'valu'
            if base.startswith('v_cmp'):
                self.dst = R[0]; self.src = set().union(*R[1:])
                if base.startswith('v_cmpx'): self.dst = self.dst | {'exec'}
            elif base in ('v_permlane16_swap_b32', 'v_permlane32_swap_b32', 'v_swap_b32'):
                self.dst = R[0] | R[1]; self.src = R[0] | R[1]
            elif base in ('v_add_co_u32', 'v_sub_co_u32', 'v_addc_co_u32', 'v_subb_co_u32'):
                self.dst = R[0] | R[1]; self.src = set().union(*R[2:])
            else:
                self.dst = R[0]; self.src = set().union(*R[1:]) if len(R) > 1 else set()
                if base in ('v_fmac_f32', 'v_dot2c_f32_bf16', 'v_writelane_b32', 'v_pk_fmac_f16') or 'dpp' in op or 'row_' in mods or 'quad_perm' in mods:
                    self.src = self.src | R[0]
                if base == 'v_cndmask_b32' and len(R) == 3: self.src = self.src | {'vcc'}
            if 'row_' in mods or 'quad_perm' in mods or op.endswith('_dpp'): self.kind = 'dpp'
        elif op.startswith('ds_'):
            self.kind = 'ds'
            if op.startswith('ds_read') or op.startswith('ds_bpermute') or op.startswith('ds_swizzle') or '_rtn' in op:
                self.dst = R[0]; self.src = set().union(*R[1:])
            else:
                self.src = set().union(*R)
        elif op.startswith('buffer_') or op.startswith('global_'):
            self.kind = 'vmem'
            allm = mods.split()
            if op in ('buffer_wbl2', 'buffer_inv'):
                pass
            elif 'lds' in allm or '_lds_' in op:
                self.lds_dma = True; self.src = set().union(*R) | {'m0'}
            elif '_load' in op:
                self.dst = R[0]; self.src = set().union(*R[1:])
                if 'd16' in op: self.src |= R[0]
            elif '_store' in op:
                self.src = set().union(*R)
                self.data = R[0] if op.startswith('buffer_') else R[1]
                self.wide_store = op.endswith('x4') or op.endswith('x3')
            elif '_atomic' in op:
                self.src = set().union(*R)
                if 'sc0' in allm: self.dst = R[0]
        elif op.startswith('s_'):
            self.kind = 'salu'
            if op == 's_nop': self.states = int(ops[0]) + 1
            elif op.startswith('s_cbranch') or op == 's_branch': self.target = ops[0]; self.kind = 'branch'
            elif op.startswith('s_cmp') or op.startswith('s_bitcmp') or op in ('s_waitcnt', 's_barrier', 's_endpgm', 's_setprio', 's_sleep'):
                self.src = set().union(*R) if R else set()
            elif op.startswith('s_load') or op.startswith('s_mem'):
                self.kind = 'smem'; self.dst = R[0]; self.src = set().union(*R[1:]) if len(R) > 1 else set()
            else:
                self.dst = R[0] if R else set(); self.src = set().union(*R[1:]) if len(R) > 1 else set()
                if 'saveexec' in op: self.dst = self.dst | {'exec'}
        else:
            raise ValueError('unknown instr: ' + text)

def passes(op):
    return 8 if '32x32' in op else 4

def need(p, c):
    n = 0
    pv = p.kind in ('valu', 'dpp'); cv = c.kind in ('valu', 'dpp')
    base_p = re.sub(r'_(e32|e64|dpp|sdwa)$', '', p.op); base_c = re.sub(r'_(e32|e64|dpp|sdwa)$', '', c.op)
    if p.kind == 'mfma':
        ps = passes(p.op); far = {4: 8, 8: 12}[ps]
        if c.kind == 'mfma':
            if p.dst & c.srcab: n = max(n, far)
            if p.dst & c.srcc and not (p.dst == c.srcc and passes(c.op) == ps): n = max(n, {4: 6, 8: 10}[ps])
            if p.dst & c.dst and not (p.dst & c.srcc): n = max(n, far)
        elif cv or c.kind in ('ds', 'vmem'):
            if p.dst & (c.src | c.dst): n = max(n, far)
            if cv and (p.srcc & c.dst): n = max(n, {4: 3, 8: 7}[ps])
    if pv:
        vd = {r for r in p.dst if r[0] in 'va' and r != 'vcc'}
        sd = {r for r in p.dst if r[0] == 's' or r == 'vcc'}
        if c.kind == 'mfma' and (vd & c.src): n = max(n, 2)
        if c.kind == 'mfma' and 'exec' in p.dst: n = max(n, 4)
        if c.kind == 'dpp' and (vd & c.src): n = max(n, 2)
        if c.kind == 'dpp' and 'exec' in p.dst: n = max(n, 5)
        if base_c.startswith('v_permlane') and (vd & c.src): n = max(n, 2)
        if base_c in ('v_readlane_b32', 'v_readfirstlane_b32') and (vd & c.src): n = max(n, 1)
        if base_p in TRANS and cv and base_c not in TRANS and (vd & c.src): n = max(n, 1)
        if base_p in TRANS and cv and base_c in TRANS and (vd & c.src): n = max(n, 1)
        if base_p.startswith('v_dot') and cv and (vd & (c.src | c.dst)):
            if not (base_c == base_p and (vd & c.dst)): n = max(n, 3)
        if base_p.startswith('v_dot') and c.kind in ('ds', 'vmem', 'mfma') and (vd & c.src): n = max(n, 3)
        if sd:
            if c.kind == 'vmem' and (sd & c.src): n = max(n, 5)
            if cv and (sd & c.src): n = max(n, 4 if base_c in ('v_readlane_b32', 'v_writelane_b32') else 2)
            if c.kind in ('salu', 'branch', 'smem') and (sd & c.src): n = max(n, 2)
        if 'exec' in p.dst and base_c in ('v_readlane_b32', 'v_readfirstlane_b32', 'v_writelane_b32'): n = max(n, 4)
        if 'exec' in p.dst and base_c.startswith('v_permlane'): n = max(n, 4)
    if p.kind == 'salu' and 'm0' in p.dst and c.lds_dma: n = max(n, 1)
    if p.kind == 'vmem' and p.wide_store and (p.data & c.dst) and c.kind in ('valu', 'dpp', 'mfma', 'ds', 'vmem'):
        n = max(n, 2)
    return n

class Asm:
    def __init__(self):
        self.L = []
    def __call__(self, text):
        for line in text.split('\n'):
            line = line.strip()
            if line: self.L.append(Ins(line))
    def fix(self):
        out = []
        for ins in self.L:
            if ins.op is not None:
                pad = self._pad(out, ins)
                while pad > 0:
                    k = min(pad, 16); out.append(Ins(f's_nop {k-1}')); pad -= k
            out.append(ins)
        self.L = out
        pos = {i.label: k for k, i in enumerate(out) if i.label}
        for k, ins in enumerate(out):
            if ins.target is not None:
                hist = [x for x in out[max(0, k-40):k+1]]
                t = pos[ins.target]
                cnt = 0
                for c in out[t:t+60]:
                    if c.op is not None:
                        pad = self._pad(hist, c)
                        assert pad == 0, f'hazard across branch {ins.text} -> {c.text} needs {pad} more'
                        cnt += c.states
                        if c.op == 's_branch' or cnt > 24: break
                    hist.append(c)
    @staticmethod
    def _pad(hist, c):
        dist = 0; pad = 0
        for p in reversed(hist):
            if p.op is None: continue
            n = need(p, c)
            if n - dist > pad: pad = n - dist
            dist += p.states
            if dist > 20: break
        return pad
    def text(self):
        return '\n'.join((i.text if i.kind in ('label', 'dir') else '    ' + i.text) for i in self.L)

def kernel_header(name):
    return f'.globl {name}\n.p2align 8\n.type {name},@function\n{name}:'

def kernel_desc(name, vgpr, sgpr=96):
    acc = (vgpr + 3) // 4 * 4
    return (f'.p2align 6\n.amdhsa_kernel {name}\n  .amdhsa_next_free_vgpr {vgpr}\n  .amdhsa_next_free_sgpr {sgpr}\n'
            f'  .amdhsa_accum_offset {acc}\n  .amdhsa_group_segment_fixed_size 0\n  .amdhsa_kernarg_size 88\n'
            f'  .amdhsa_user_sgpr_count 2\n  .amdhsa_user_sgpr_kernarg_segment_ptr 1\n'
            f'  .amdhsa_system_sgpr_workgroup_id_x 1\n.end_amdhsa_kernel')
```

```python
import sys
sys.path.insert(0, 'gen')
from asmlib import *

OPT = dict(a.split('=') for a in sys.argv[1:] if '=' in a)
def opt(k, d): return type(d)(OPT.get(k, d))

XN_OFF  = 0
U_OFF   = 4 << 20
KVP_OFF = 24 << 20
ZP_OFF  = 27 << 20
YP_OFF  = 28 << 20
WS_USED = 40 << 20
LOG2E = 0x3fb8aa3b
NLOG2E = 0xbfb8aa3b
EPS_LN = 0x3727c5ac
EPS_DEN = 0x358637bd

def srd(A, base, ptr, nbytes):
    A(f's_mov_b32 s{base}, s{ptr}\ns_and_b32 s{base+1}, s{ptr+1}, 0xffff\ns_mov_b32 s{base+2}, {nbytes}\ns_mov_b32 s{base+3}, 0x20000')

def allreduce64(A, v, t, op):
    for r in (8, 4, 2, 1):
        A(f'{op}_dpp v{v}, v{v}, v{v} row_ror:{r} row_mask:0xf bank_mask:0xf')
    A(f'v_mov_b32 v{t}, v{v}\nv_permlane16_swap_b32 v{v}, v{t}\n{op} v{v}, v{v}, v{t}')
    A(f'v_mov_b32 v{t}, v{v}\nv_permlane32_swap_b32 v{v}, v{t}\n{op} v{v}, v{v}, v{t}')

def gen_k0():
    A = Asm()
    A(kernel_header('ln_kernel'))
    A('s_cmp_ge_u32 s2, 256\ns_cbranch_scc1 K0_done')
    A('s_load_dwordx2 s[16:17], s[0:1], 0\ns_load_dwordx2 s[18:19], s[0:1], 80')
    A('v_lshrrev_b32 v2, 6, v0\nv_and_b32 v1, 63, v0')
    A('s_lshl_b32 s3, s2, 14\nv_lshlrev_b32 v2, 11, v2\nv_lshl_add_u32 v1, v1, 4, v2\nv_add_u32 v1, s3, v1')
    A('s_waitcnt lgkmcnt(0)')
    srd(A, 4, 16, 4 << 20); srd(A, 8, 18, 4 << 20)
    A('buffer_load_dwordx4 v[4:7], v1, s[4:7], 0 offen\nbuffer_load_dwordx4 v[8:11], v1, s[4:7], 0 offen offset:1024')
    A('s_waitcnt vmcnt(0)')
    for i in range(8):
        A(f'v_lshlrev_b32 v{16+2*i}, 16, v{4+i}\nv_and_b32 v{17+2*i}, 0xffff0000, v{4+i}')
    A('v_add_f32 v12, v16, v17')
    for i in range(2, 16): A(f'v_add_f32 v12, v12, v{16+i}')
    allreduce64(A, 12, 13, 'v_add_f32')
    A('v_mul_f32 v12, 0x3a800000, v12')
    A('v_sub_f32 v14, v16, v12\nv_mul_f32 v15, v14, v14')
    for i in range(1, 16): A(f'v_sub_f32 v14, v{16+i}, v12\nv_fmac_f32 v15, v14, v14')
    allreduce64(A, 15, 13, 'v_add_f32')
    A('v_mul_f32 v15, 0x3a800000, v15')
    def rb(v): A(f'v_cvt_pk_bf16_f32 v{v}, v{v}, v{v}\nv_lshlrev_b32 v{v}, 16, v{v}')
    rb(12); rb(15)
    A(f'v_add_f32 v15, {EPS_LN}, v15'); rb(15)
    A('v_sqrt_f32 v15, v15'); rb(15)
    A('v_rcp_f32 v15, v15')
    for i in range(16): A(f'v_sub_f32 v{16+i}, v{16+i}, v12')
    for i in range(16): A(f'v_mul_f32 v{16+i}, v{16+i}, v15')
    for i in range(8): A(f'v_cvt_pk_bf16_f32 v{4+i}, v{16+2*i}, v{17+2*i}')
    A('buffer_store_dwordx4 v[4:7], v1, s[8:11], 0 offen\nbuffer_store_dwordx4 v[8:11], v1, s[8:11], 0 offen offset:1024')
    A('K0_done:\ns_endpgm')
    A.fix()
    return A.text(), kernel_desc('ln_kernel', 32, 32)

WSLOT = 14464; WGRP = 1808; XB = 4 * WSLOT; XSLOT = 32768
P1_LDS = XB + 3 * XSLOT + 4096
def acc1(sb, i): return 128 + (i * 4 + sb) * 4
def vr(b, n=4): return f'v[{b}:{b+n-1}]'

def interleave(mf, others, first=0, last_free=0):
    out = []; n = len(mf) - first - last_free; k = 0
    for i, m in enumerate(mf):
        out.append(m)
        if i >= first:
            want = min(len(others), ((i - first + 1) * len(others) + n - 1) // n)
            while k < want:
                out.append(others[k]); k += 1
    out += others[k:]
    return out

def p1_iter(A, NB, half, tag):
    ws_m = 64 + 32 * half; xs_m = 32 + 16 * half
    ws_r = 64 + 32 * (1 - half); xs_r = 32 + 16 * (1 - half)
    A('s_waitcnt vmcnt(8) lgkmcnt(0)\ns_barrier')
    if half == 0: A('v_add_u32 v8, s30, v6\nv_add_u32 v9, s33, v7'); woff = WSLOT
    else:         A('v_add_u32 v8, s31, v5\nv_add_u32 v9, s34, v7'); woff = 0
    mf = [f'v_mfma_f32_16x16x32_bf16 {vr(acc1(sb,i))}, {vr(ws_m+4*i)}, {vr(xs_m+4*sb)}, {vr(acc1(sb,i))}'
          for i in range(NB) for sb in range(4)]
    rd = []
    for i in range(NB):
        for h in range(2):
            rd.append(f'ds_read_b64_tr_b16 {vr(ws_r+4*i+2*h,2)}, v9 offset:{woff + WGRP*h + 32*i}')
        if i < 4: rd.append(f'ds_read_b128 {vr(xs_r+4*i)}, v8 offset:{2048*i}')
    if half == 0:
        dma = ['s_cmp_ge_u32 s37, 14\ns_cselect_b32 s10, 0, s10\ns_add_u32 m0, s33, s39\ns_mov_b64 exec, s[28:29]\n'
               'buffer_load_dwordx4 v4, s[8:11], s35 offen lds\ns_mov_b64 exec, -1',
               's_add_u32 m0, m0, s26\ns_add_u32 s40, s35, s24\ns_mov_b64 exec, s[28:29]\n'
               'buffer_load_dwordx4 v4, s[8:11], s40 offen lds\ns_mov_b64 exec, -1\ns_add_u32 s35, s35, s25',
               's_add_u32 s41, s38, 2048\ns_add_u32 m0, s32, s41\ns_add_u32 s40, s36, 32768\n'
               'buffer_load_dwordx4 v2, s[4:7], s40 offen lds',
               's_add_u32 m0, m0, 1024\ns_nop 0\nbuffer_load_dwordx4 v3, s[4:7], s40 offen lds']
    else:
        dma = [f's_add_u32 s41, s33, {WSLOT}\ns_add_u32 m0, s41, s39\ns_mov_b64 exec, s[28:29]\n'
               'buffer_load_dwordx4 v4, s[8:11], s35 offen lds\ns_mov_b64 exec, -1',
               's_add_u32 m0, m0, s26\ns_add_u32 s40, s35, s24\ns_mov_b64 exec, s[28:29]\n'
               'buffer_load_dwordx4 v4, s[8:11], s40 offen lds\ns_mov_b64 exec, -1\ns_add_u32 s35, s35, s25',
               's_cmp_ge_u32 s37, 13\ns_cselect_b32 s6, 0, s6\ns_add_u32 m0, s30, s38\ns_add_u32 s40, s36, 128\n'
               'buffer_load_dwordx4 v2, s[4:7], s40 offen lds',
               's_add_u32 m0, m0, 1024\ns_nop 0\nbuffer_load_dwordx4 v3, s[4:7], s40 offen lds',
               's_mov_b32 s40, s30\ns_mov_b32 s30, s31\ns_mov_b32 s31, s32\ns_mov_b32 s32, s40\n'
               's_mov_b32 s40, s33\ns_mov_b32 s33, s34\ns_mov_b32 s34, s40\ns_add_u32 s36, s36, 128\ns_add_u32 s37, s37, 1']
    others = []; step = max(1, len(rd) // 4); k = 0
    for n, r in enumerate(rd):
        others.append(r)
        if (n + 1) % step == 0 and k < 4: others.append(dma[k]); k += 1
    others += dma[k:]
    if opt('nomfma', 0): mf = ['s_nop 0'] * len(mf)
    for s in interleave(mf, others, 0, opt('p1_tailfree', 4)): A(s)

def p1_loop(A, NB, tag):
    A(f'P1_loop{tag}:')
    p1_iter(A, NB, 0, tag); p1_iter(A, NB, 1, tag)
    A(f's_cmp_lt_u32 s37, 16\ns_cbranch_scc1 P1_loop{tag}')

def p1_first_frags(A, NB):
    A('s_waitcnt vmcnt(12)\ns_barrier')
    A('v_add_u32 v8, s30, v5')
    for i in range(NB):
        for h in range(2): A(f'ds_read_b64_tr_b16 {vr(64+4*i+2*h,2)}, v7 offset:{WGRP*h + 32*i}')
    for sb in range(4): A(f'ds_read_b128 {vr(32+4*sb)}, v8 offset:{2048*sb}')

def mish_epilogue(A, NB):
    A('s_waitcnt lgkmcnt(0)')
    A('s_lshl_b32 s40, s21, 4\ns_lshl_b32 s41, s19, 2\ns_add_u32 s40, s40, s41\ns_mul_i32 s40, s40, 144\n'
      's_mul_i32 s41, s22, 7\ns_add_u32 s40, s40, s41\ns_lshl_b32 s41, s20, 2\ns_add_u32 s40, s40, s41\n'
      f's_lshl_b32 s40, s40, 10\ns_add_u32 s40, s40, {U_OFF}\ns_mov_b32 s42, {LOG2E}')
    A('v_lshlrev_b32 v10, 4, v1')
    n = 0
    for sb in range(4):
        for p in range(NB // 2):
            a = [acc1(sb, 2*p) + r for r in range(4)] + [acc1(sb, 2*p+1) + r for r in range(4)]
            T = 32 + 16 * (n % 2); Uu = T + 8; D = 64 + 4 * (n % 4); n += 1
            for e in range(8): A(f'v_mul_f32 v{T+e}, s42, v{a[e]}')
            for e in range(8): A(f'v_exp_f32 v{T+e}, v{T+e}')
            for e in range(8): A(f'v_fma_f32 v{Uu+e}, v{T+e}, 0.5, 1.0')
            for e in range(8): A(f'v_fma_f32 v{T+e}, v{T+e}, v{Uu+e}, 1.0')
            for e in range(8): A(f'v_rcp_f32 v{T+e}, v{T+e}')
            for e in range(8): A(f'v_fma_f32 v{T+e}, -v{a[e]}, v{T+e}, v{a[e]}')
            for e in range(4): A(f'v_cvt_pk_bf16_f32 v{D+e}, v{T+2*e}, v{T+2*e+1}')
            A(f'buffer_store_dwordx4 {vr(D)}, v10, s[12:15], s40 offen offset:{1024*p}')
        if sb < 3: A(f's_add_u32 s40, s40, {144*1024}')

def pair_reduce(A, items, op):
    for a, b, t in items: A(f'v_permlane32_swap_b32 v{a}, v{b}')
    for a, b, t in items: A(f'{op} v{a}, v{a}, v{b}')
    for a, b, t in items: A(f'v_mov_b32 v{b}, v{a}')
    for a, b, t in items: A(f'v_permlane16_swap_b32 v{a}, v{b}')
    for a, b, t in items: A(f'{op} v{a}, v{a}, v{b}')
    for a, b, t in items: A(f'v_mov_b32 v{t}, v{a}')
    for a, b, t in items: A(f'v_permlane32_swap_b32 v{a}, v{t}')

def phi(A, b0, out):
    BF = 96; P = 32
    for sb in range(4):
        for q in range(4):
            s = acc1(sb, b0 + q // 2) + 2 * (q % 2)
            A(f'v_cvt_pk_bf16_f32 v{BF+4*sb+q}, v{s}, v{s+1}')
    for sb in range(4):
        for fb in range(2):
            A(f'v_mfma_f32_16x16x32_bf16 {vr(P+16*sb+4*fb)}, {vr(224+4*fb)}, {vr(BF+4*sb)}, 0')
    MX = lambda sb: 12 + 3 * sb; NM = lambda sb: 13 + 3 * sb; TT = lambda sb: 14 + 3 * sb
    for sb in range(4):
        p = P + 16 * sb
        A(f'v_max3_f32 v{MX(sb)}, v{p}, v{p+1}, v{p+2}\nv_max3_f32 v{NM(sb)}, -v{p}, -v{p+1}, -v{p+2}')
    for k in (3, 5):
        for sb in range(4):
            p = P + 16 * sb
            A(f'v_max3_f32 v{MX(sb)}, v{MX(sb)}, v{p+k}, v{p+k+1}\nv_max3_f32 v{NM(sb)}, v{NM(sb)}, -v{p+k}, -v{p+k+1}')
    for sb in range(4):
        p = P + 16 * sb
        A(f'v_max_f32 v{MX(sb)}, v{MX(sb)}, v{p+7}\nv_max_f32_e64 v{NM(sb)}, v{NM(sb)}, -v{p+7}')
    pair_reduce(A, [(MX(sb), NM(sb), TT(sb)) for sb in range(4)], 'v_max_f32')
    for sb in range(4):
        A(f'v_mul_f32 v{MX(sb)}, s43, v{MX(sb)}\nv_mul_f32 v{TT(sb)}, s43, v{TT(sb)}')
    for sb in range(4):
        p = P + 16 * sb
        for e in range(8): A(f'v_fma_f32 v{p+8+e}, v{p+e}, s43, v{TT(sb)}')
        for e in range(8): A(f'v_fma_f32 v{p+e}, v{p+e}, s42, v{MX(sb)}')
        for e in range(16): A(f'v_exp_f32 v{p+e}, v{p+e}')
    for sb in range(4):
        p = P + 16 * sb
        A(f'v_add_f32 v{MX(sb)}, v{p}, v{p+1}\nv_add_f32 v{NM(sb)}, v{p+8}, v{p+9}')
        for e in range(2, 8): A(f'v_add_f32 v{MX(sb)}, v{MX(sb)}, v{p+e}\nv_add_f32 v{NM(sb)}, v{NM(sb)}, v{p+8+e}')
    pair_reduce(A, [(MX(sb), NM(sb), TT(sb)) for sb in range(4)], 'v_add_f32')
    for sb in range(4): A(f'v_rcp_f32 v{MX(sb)}, v{MX(sb)}\nv_rcp_f32 v{TT(sb)}, v{TT(sb)}')
    for sb in range(4):
        p = P + 16 * sb
        for e in range(8): A(f'v_mul_f32 v{p+e}, v{p+e}, v{MX(sb)}')
        for e in range(8): A(f'v_mul_f32 v{p+8+e}, v{p+8+e}, v{TT(sb)}')
        for sign in range(2):
            for q in range(4):
                A(f'v_cvt_pk_bf16_f32 v{out(sb,sign)+q}, v{p+8*sign+2*q}, v{p+8*sign+2*q+1}')

PH_ROW = 136; PH_HEAD = 256 * PH_ROW; V_ROW = 72; V_HEAD = 256 * V_ROW; VB = 2 * PH_HEAD
def poll(A, tag, word_sgpr_off, shift_s, mask, target):
    A(f's_mov_b32 s44, 0\n{tag}_spin:')
    A(f'global_load_dword v12, v11, s[16:17] sc1\ns_waitcnt vmcnt(0)\nv_readfirstlane_b32 s45, v12')
    if shift_s: A(f's_lshr_b32 s45, s45, {shift_s}')
    A(f's_and_b32 s45, s45, {mask}\ns_cmp_ge_u32 s45, {target}\ns_cbranch_scc1 {tag}_ok')
    A(f's_sleep 2\ns_add_u32 s44, s44, 1\ns_cmp_lt_u32 s44, 0x20000\ns_cbranch_scc1 {tag}_spin\n{tag}_ok:')

def qkv_epilogue(A):
    A(f's_waitcnt vmcnt(0) lgkmcnt(0)\ns_barrier\ns_mov_b32 s42, {LOG2E}\ns_mov_b32 s43, {NLOG2E}')
    A('v_and_b32 v24, 15, v1\nv_lshrrev_b32 v25, 4, v1\ns_lshl_b32 s40, s19, 6\nv_add_u32 v26, s40, v24')
    A(f'v_mul_u32_u24 v27, {V_ROW}, v26\nv_mul_u32_u24 v26, {PH_ROW}, v26\nv_lshl_add_u32 v26, v25, 3, v26\nv_lshl_add_u32 v27, v25, 3, v27')
    A(f's_mul_i32 s40, s20, {PH_HEAD}\nv_add_u32 v26, s40, v26\ns_mul_i32 s40, s20, {V_HEAD}\ns_add_u32 s40, s40, {VB}\nv_add_u32 v27, s40, v27')
    for sb in range(4):
        for db in range(2):
            s = acc1(sb, 4 + db); d = 112 + 4 * sb + 2 * db
            A(f'v_cvt_pk_bf16_f32 v{d}, v{s}, v{s+1}\nv_cvt_pk_bf16_f32 v{d+1}, v{s+2}, v{s+3}')
            A(f'ds_write_b64 v27, {vr(d,2)} offset:{sb*16*V_ROW + 32*db}')
    outk = lambda sb, sign: acc1(0, 4) + 8 * sb + 4 * sign
    phi(A, 2, outk)
    for sb in range(4):
        for sign in range(2):
            for fb in range(2):
                A(f'ds_write_b64 v26, {vr(outk(sb,sign)+2*fb,2)} offset:{sb*16*PH_ROW + 64*sign + 32*fb}')
    A('v_lshrrev_b32 v28, 2, v24\nv_lshl_add_u32 v28, v25, 3, v28\nv_and_b32 v29, 3, v1')
    A(f'v_mul_u32_u24 v30, {V_ROW}, v28\nv_mul_u32_u24 v28, {PH_ROW}, v28\nv_lshl_add_u32 v28, v29, 3, v28\nv_lshl_add_u32 v30, v29, 3, v30')
    A(f's_mul_i32 s40, s20, {PH_HEAD}\ns_lshl_b32 s41, s19, 5\ns_add_u32 s40, s40, s41\nv_add_u32 v28, s40, v28')
    A(f's_mul_i32 s40, s20, {V_HEAD}\ns_add_u32 s40, s40, {VB}\nv_add_u32 v30, s40, v30')
    for q in range(4): A(f'v_mov_b32 v{232+q}, 0x3f803f80')
    A('s_waitcnt lgkmcnt(0)\ns_barrier')
    KV = 236
    def rd(u):
        b = 32 + 12 * (u % 4)
        for h in range(2): A(f'ds_read_b64_tr_b16 {vr(b+2*h,2)}, v28 offset:{(32*u+4*h)*PH_ROW}')
        for db in range(2):
            for h in range(2): A(f'ds_read_b64_tr_b16 {vr(b+4+4*db+2*h,2)}, v30 offset:{(32*u+4*h)*V_ROW + 32*db}')
    rd(0); rd(1)
    for u in range(8):
        A(f's_waitcnt lgkmcnt({6 if u < 7 else 0})')
        b = 32 + 12 * (u % 4)
        for k, bb in enumerate((vr(b+4), vr(b+8), vr(232))):
            c = '0' if u == 0 else vr(KV + 4*k)
            A(f'v_mfma_f32_16x16x32_bf16 {vr(KV+4*k)}, {vr(b)}, {bb}, {c}')
        if u + 2 < 8: rd(u + 2)
    A('s_lshl_b32 s40, s22, 3\ns_add_u32 s40, s40, s21\ns_lshl_b32 s40, s40, 3\ns_add_u32 s40, s40, s18')
    A(f's_lshl_b32 s41, s40, 11\ns_add_u32 s41, s41, {KVP_OFF}\ns_lshl_b32 s40, s40, 6\ns_add_u32 s40, s40, {ZP_OFF}')
    A('v_lshlrev_b32 v10, 4, v1\nv_lshlrev_b32 v31, 4, v25')
    A(f'buffer_store_dwordx4 {vr(KV)}, v10, s[12:15], s41 offen sc1\nbuffer_store_dwordx4 {vr(KV+4)}, v10, s[12:15], s41 offen offset:1024 sc1')
    A('v_cmp_eq_u32 vcc, 0, v24\ns_mov_b64 exec, vcc')
    A(f'buffer_store_dwordx4 {vr(KV+8)}, v31, s[12:15], s40 offen sc1\ns_mov_b64 exec, -1')
    A('s_lshl_b32 s46, s22, 2\nv_mov_b32 v11, s46')
    A('s_waitcnt vmcnt(0)\ns_barrier\ns_cmp_lg_u32 s18, 0\ns_cbranch_scc1 P1_nosig')
    A('v_mov_b32 v12, 1\ns_mov_b64 exec, 1\nglobal_atomic_add v11, v12, s[16:17] sc1\ns_mov_b64 exec, -1\nP1_nosig:')
    outq = lambda sb, sign: acc1(0, 2) + 8 * sb + 4 * sign
    phi(A, 0, outq)
    poll(A, 'P1_kv', None, 0, 0xffff, 8)
    A(f's_lshl_b32 s40, s22, 6\ns_add_u32 s40, s40, s18\ns_lshl_b32 s41, s40, 11\ns_add_u32 s41, s41, {KVP_OFF}\n'
      f's_lshl_b32 s40, s40, 6\ns_add_u32 s40, s40, {ZP_OFF}')
    for m in range(8):
        b = 32 + 12 * m
        A(f'buffer_load_dwordx4 {vr(b)}, v10, s[12:15], s41 offen sc1\nbuffer_load_dwordx4 {vr(b+4)}, v10, s[12:15], s41 offen offset:1024 sc1')
        A(f'buffer_load_dwordx4 {vr(b+8)}, v31, s[12:15], s40 offen offset:{512*m} sc1')
        if m < 7: A(f's_add_u32 s41, s41, {8*2048}')
    A('s_mul_i32 s40, s20, 6144\ns_lshr_b32 s41, s19, 1\ns_lshl_b32 s41, s41, 10\ns_add_u32 s41, s40, s41\n'
      's_and_b32 s44, s19, 1\ns_lshl_b32 s44, s44, 3\ns_add_u32 s41, s41, s44\nv_add_u32 v28, s41, v10\nv_add_u32 v29, s40, v10')
    for m in range(1, 8):
        A(f's_waitcnt vmcnt({3*(7-m)})')
        for e in range(12): A(f'v_add_f32 v{32+e}, v{32+e}, v{32+12*m+e}')
    for k in range(3):
        A(f'v_cvt_pk_bf16_f32 v{44+2*k}, v{32+4*k}, v{33+4*k}\nv_cvt_pk_bf16_f32 v{45+2*k}, v{34+4*k}, v{35+4*k}')
        A(f'ds_write_b64 v28, {vr(44+2*k,2)} offset:{2048*k}')
    A('s_waitcnt lgkmcnt(0)\ns_barrier')
    for k in range(3):
        for sign in range(2): A(f'ds_read_b128 {vr(52+8*k+4*sign)}, v29 offset:{2048*k + 1024*sign}')
    A('s_lshl_b32 s40, s21, 4\ns_lshl_b32 s41, s19, 2\ns_add_u32 s40, s40, s41\ns_mul_i32 s40, s40, 144\n'
      's_lshl_b32 s41, s22, 1\ns_add_u32 s40, s40, s41\ns_add_u32 s40, s40, s20\ns_add_u32 s40, s40, 112\n'
      f's_lshl_b32 s40, s40, 10\ns_add_u32 s40, s40, {U_OFF}\ns_mov_b32 s41, {EPS_DEN}')
    A('s_waitcnt lgkmcnt(0)')
    N = lambda sb, k: 76 + 12 * sb + 4 * k
    for sign in range(2):
        for sb in range(4):
            for k in range(3):
                c = '0' if sign == 0 else vr(N(sb, k))
                A(f'v_mfma_f32_16x16x32_bf16 {vr(N(sb,k))}, {vr(52+8*k+4*sign)}, {vr(outq(sb,sign))}, {c}')
    for sb in range(4): A(f'v_add_f32 v{N(sb,2)}, s41, v{N(sb,2)}')
    for sb in range(4): A(f'v_rcp_f32 v{N(sb,2)}, v{N(sb,2)}')
    for sb in range(4):
        for e in range(8): A(f'v_mul_f32 v{N(sb,0)+e}, v{N(sb,0)+e}, v{N(sb,2)}')
        for q in range(4): A(f'v_cvt_pk_bf16_f32 v{32+4*sb+q}, v{N(sb,0)+2*q}, v{N(sb,0)+2*q+1}')
        A(f'buffer_store_dwordx4 {vr(32+4*sb)}, v10, s[12:15], s40 offen')
        if sb < 3: A(f's_add_u32 s40, s40, {144*1024}')

def gen_p1():
    A = Asm()
    A(kernel_header('p1_kernel'))
    A('s_cmp_ge_u32 s2, 256\ns_cbranch_scc1 P1_done')
    A('s_load_dwordx4 s[48:51], s[0:1], 8\ns_load_dwordx4 s[52:55], s[0:1], 40\ns_load_dwordx4 s[56:59], s[0:1], 72')
    A('v_lshrrev_b32 v2, 6, v0\nv_and_b32 v1, 63, v0\nv_readfirstlane_b32 s18, v2')
    A('s_and_b32 s40, s2, 7\ns_lshr_b32 s41, s2, 3')
    A('s_and_b32 s21, s40, 1\ns_lshl_b32 s21, s21, 2\ns_and_b32 s42, s41, 3\ns_add_u32 s21, s21, s42')
    A('s_lshr_b32 s22, s40, 1\ns_lshl_b32 s22, s22, 2\ns_lshr_b32 s42, s41, 2\ns_and_b32 s43, s42, 3\ns_add_u32 s22, s22, s43\ns_lshr_b32 s23, s42, 2')
    A('s_and_b32 s19, s18, 3\ns_lshr_b32 s20, s18, 2')
    A('v_lshrrev_b32 v10, 3, v1\nv_lshlrev_b32 v10, 11, v10\nv_lshrrev_b32 v11, 4, v1\nv_and_b32 v12, 7, v1')
    A('v_xor_b32 v12, v12, v11\nv_lshl_add_u32 v2, v12, 4, v10\nv_xor_b32 v12, 4, v12\nv_lshl_add_u32 v3, v12, 4, v10')
    A('s_lshl_b32 s40, s21, 19\ns_lshl_b32 s41, s18, 16\ns_add_u32 s40, s40, s41\nv_add_u32 v2, s40, v2\ns_add_u32 s40, s40, 16384\nv_add_u32 v3, s40, v3')
    A('v_and_b32 v13, 15, v1\nv_lshrrev_b32 v12, 1, v13\nv_xor_b32 v12, v12, v11\nv_lshlrev_b32 v14, 7, v13')
    A('s_lshl_b32 s40, s19, 13\nv_add_u32 v14, s40, v14\nv_lshl_add_u32 v5, v12, 4, v14\nv_xor_b32 v12, 4, v12\nv_lshl_add_u32 v6, v12, 4, v14')
    A(f's_mov_b32 s30, {XB}\ns_mov_b32 s31, {XB+XSLOT}\ns_mov_b32 s32, {XB+2*XSLOT}\ns_mov_b32 s33, 0\ns_mov_b32 s34, {2*WSLOT}')
    A(f's_lshl_b32 s38, s18, 12\ns_mul_i32 s39, s18, {WGRP}\ns_mov_b32 s37, 0\ns_mov_b32 s36, 256')
    A(f'v_lshrrev_b32 v15, 2, v13\nv_and_b32 v12, 3, v1\nv_mul_u32_u24 v7, {2*WGRP}, v11\nv_lshl_add_u32 v7, v12, 3, v7')
    A('s_waitcnt lgkmcnt(0)')
    srd(A, 12, 58, WS_USED)
    A(f's_add_u32 s4, s58, {XN_OFF}\ns_addc_u32 s5, s59, 0\ns_and_b32 s5, s5, 0xffff\ns_mov_b32 s6, {4<<20}\ns_mov_b32 s7, 0x20000')
    A('s_mov_b64 s[16:17], s[56:57]')
    A('s_cmp_eq_u32 s23, 0\ns_cbranch_scc1 P1_qkv_setup')
    srd(A, 8, 52, 1024 * 7168); srd(A, 60, 54, 7168)
    A(f's_mov_b32 s24, {2*7168}\ns_mov_b32 s25, {32*7168}\ns_mov_b32 s26, 896\ns_mov_b32 s28, -1\ns_mov_b32 s29, 0x00ffffff')
    A('v_cmp_le_u32 vcc, 28, v1\nv_cndmask_b32 v12, 0, 1, vcc\nv_mul_u32_u24 v14, 28, v12\nv_sub_u32 v14, v1, v14')
    A('s_lshl_b32 s40, s18, 2\nv_add_u32 v12, s40, v12\nv_mul_u32_u24 v12, 7168, v12\nv_lshl_add_u32 v4, v14, 4, v12')
    A('s_mul_i32 s40, s22, 448\nv_add_u32 v4, s40, v4')
    A('v_mul_u32_u24 v12, 448, v15\nv_add_u32 v7, v7, v12\ns_lshl_b32 s41, s20, 8\nv_add_u32 v7, s41, v7')
    A('s_add_u32 s40, s40, s41\nv_lshlrev_b32 v12, 3, v11')
    for i in range(8): A(f'buffer_load_dwordx2 {vr(96+2*i,2)}, v12, s[60:63], s40 offen offset:{32*i}')
    A('s_branch P1_issue')
    A('P1_qkv_setup:')
    srd(A, 8, 48, 1024 * 6144); srd(A, 60, 50, 65536)
    A(f's_mov_b32 s24, {2*6144}\ns_mov_b32 s25, {32*6144}\ns_mov_b32 s26, 832\ns_mov_b32 s28, -1\ns_mov_b32 s29, 0x0000ffff')
    A('v_cmp_le_u32 vcc, 24, v1\nv_cndmask_b32 v12, 0, 1, vcc\nv_mul_u32_u24 v14, 24, v12\nv_sub_u32 v14, v1, v14')
    A('s_lshl_b32 s40, s18, 2\nv_add_u32 v12, s40, v12\nv_mul_u32_u24 v12, 6144, v12')
    A('v_cmp_le_u32 vcc, 12, v14\nv_cndmask_b32 v16, 0, 1, vcc\nv_mul_u32_u24 v17, 12, v16\nv_sub_u32 v14, v14, v17')
    A('v_lshl_add_u32 v12, v16, 6, v12\nv_lshrrev_b32 v17, 2, v14\nv_lshl_add_u32 v12, v17, 11, v12\nv_and_b32 v14, 3, v14\nv_lshl_add_u32 v4, v14, 4, v12')
    A('s_lshl_b32 s40, s22, 7\nv_add_u32 v4, s40, v4')
    A('v_and_b32 v12, 1, v15\nv_mul_u32_u24 v12, 384, v12\nv_lshrrev_b32 v14, 1, v15\nv_mul_u32_u24 v14, 832, v14\nv_add3_u32 v7, v7, v12, v14')
    A('s_mul_i32 s41, s20, 192\nv_add_u32 v7, s41, v7')
    A('s_lshl_b32 s40, s22, 1\ns_add_u32 s40, s40, s20\ns_lshl_b32 s40, s40, 11\nv_lshlrev_b32 v12, 8, v11\nv_lshl_add_u32 v12, v13, 1, v12')
    for fb in range(2):
        for j in range(8):
            A(f'buffer_load_ushort v{96+8*fb+j}, v12, s[60:63], s40 offen offset:{(j if j < 4 else 12 + j)*64 + 32*fb}')
    A('P1_issue:')
    def xdma(slot_s, slab, e):
        A(f's_add_u32 m0, s{slot_s}, s38\ns_mov_b32 s40, {slab*128 + e*32768}')
        if e: A('s_add_u32 m0, m0, 2048\ns_nop 0')
        A('buffer_load_dwordx4 v2, s[4:7], s40 offen lds\ns_add_u32 m0, m0, 1024\ns_nop 0\nbuffer_load_dwordx4 v3, s[4:7], s40 offen lds')
    def wdma(j):
        A(f's_add_u32 m0, s39, {j*WSLOT}\ns_mov_b64 exec, s[28:29]\nbuffer_load_dwordx4 v4, s[8:11], s35 offen lds\n'
          's_add_u32 m0, m0, s26\ns_add_u32 s40, s35, s24\nbuffer_load_dwordx4 v4, s[8:11], s40 offen lds\n'
          's_mov_b64 exec, -1\ns_add_u32 s35, s35, s25')
    A('s_mov_b32 s35, 0')
    xdma(30, 0, 0); xdma(30, 0, 1); wdma(0); wdma(1); xdma(31, 1, 0); xdma(31, 1, 1); wdma(2); wdma(3); xdma(32, 2, 0)
    A('s_waitcnt vmcnt(18)')
    A('s_cmp_eq_u32 s23, 0\ns_cbranch_scc1 P1_qkv_init')
    for i in range(8):
        a = acc1(0, i)
        A(f'v_lshlrev_b32 v{a}, 16, v{96+2*i}\nv_and_b32 v{a+1}, 0xffff0000, v{96+2*i}\n'
          f'v_lshlrev_b32 v{a+2}, 16, v{97+2*i}\nv_and_b32 v{a+3}, 0xffff0000, v{97+2*i}')
        for sb in range(1, 4):
            for r in range(4): A(f'v_mov_b32 v{acc1(sb,i)+r}, v{a+r}')
    A('s_cmp_eq_u32 s20, 0\ns_cbranch_scc0 P1_six')
    p1_first_frags(A, 8)
    p1_loop(A, 8, 'A')
    mish_epilogue(A, 8)
    A('s_endpgm')
    A('P1_qkv_init:')
    for q in range(8): A(f'v_lshl_or_b32 v{224+q}, v{97+2*q}, 16, v{96+2*q}')
    for r in range(128, 224): A(f'v_mov_b32 v{r}, 0')
    A('P1_six:')
    p1_first_frags(A, 6)
    p1_loop(A, 6, 'B')
    A('s_cmp_eq_u32 s23, 0\ns_cbranch_scc1 P1_qkv_epi')
    mish_epilogue(A, 6)
    A('s_endpgm')
    A('P1_qkv_epi:')
    qkv_epilogue(A)
    A('P1_done:\ns_endpgm')
    A.fix()
    return A.text(), kernel_desc('p1_kernel', 256)

KA = opt('KA', 70)
SLAB = 8448; SLOT2 = 2 * SLAB; R2 = 5
P2_LDS = 131072
def acc2(base, sb, nb): return base + (nb * 2 + sb) * 4

def p2_dma(adv=True):
    g0 = ('s_cmp_ge_u32 s37, s27\ns_cselect_b32 s10, 0, s10\ns_add_u32 m0, s33, s39\ns_add_u32 s40, s35, 65536\n'
          'buffer_load_dwordx4 v4, s[8:11], s35 offen lds')
    g1 = (f's_add_u32 m0, m0, {SLAB}\ns_add_u32 s35, s35, 131072\nbuffer_load_dwordx4 v4, s[8:11], s40 offen lds\n'
          f's_add_u32 s33, s33, {SLOT2}\ns_cmp_eq_u32 s33, {R2*SLOT2}\ns_cselect_b32 s33, 0, s33\n'
          's_add_u32 s37, s37, 2\ns_cmp_eq_u32 s37, 112\ns_cselect_b32 s8, s24, s8\ns_cselect_b32 s9, s25, s9\n'
          f's_cselect_b32 s10, s26, s10\ns_cselect_b32 s35, 0, s35')
    return [g0, g1]
def p2_act(st):
    b = 32 + 8 * st
    return (f's_cmp_ge_u32 s36, s28\ns_cselect_b32 s6, 0, s6\nbuffer_load_dwordx4 {vr(b)}, v2, s[4:7], s36 offen\n'
            f'buffer_load_dwordx4 {vr(b+4)}, v3, s[4:7], s36 offen\ns_add_u32 s36, s36, 2048')
def p2_reads(wset):
    return [f'ds_read_b64_tr_b16 {vr(wset+4*nb+2*h,2)}, v9 offset:{512*h + 32*nb}' for nb in range(8) for h in range(2)]
P2_RADV = f'v_add_u32 v9, s34, v7\ns_add_u32 s34, s34, {SLOT2}\ns_cmp_eq_u32 s34, {R2*SLOT2}\ns_cselect_b32 s34, 0, s34'

def p2_loop(A, base, tag):
    for ph in range(4):
        A(f'P2_{tag}{ph}:')
        wm = 64 + 32 * (ph & 1); wr = 64 + 32 * (1 - (ph & 1)); ab = 32 + 8 * ph
        A('s_waitcnt vmcnt(12) lgkmcnt(0)\ns_barrier')
        A(P2_RADV)
        mf = [f'v_mfma_f32_16x16x32_bf16 {vr(acc2(base,sb,nb))}, {vr(wm+4*nb)}, {vr(ab+4*sb)}, {vr(acc2(base,sb,nb))}'
              for nb in range(8) for sb in range(2)]
        rd = p2_reads(wr); d = p2_dma()
        others = rd[:6] + [d[0]] + rd[6:12] + [d[1]] + rd[12:]
        if opt('nomfma', 0): mf = ['s_nop 0'] * len(mf)
        for s in interleave(mf, others, 0, 2): A(s)
        A(p2_act(ph))
    A(f's_sub_u32 s29, s29, 1\ns_cmp_lg_u32 s29, 0\ns_cbranch_scc1 P2_{tag}0')

def p2_prologue(A, ph0):
    d = p2_dma()
    A(d[0]); A(d[1])
    for m in range(4):
        A(d[0]); A(d[1]); A(p2_act((ph0 + m) % 4))
    A('s_waitcnt vmcnt(16)\ns_barrier')
    A(P2_RADV)
    for r in p2_reads(64 + 32 * (ph0 & 1)): A(r)

def p2_exchange(A, bases, keep):
    for n, base in enumerate(bases):
        for nb in range(8): A(f'ds_write_b128 v10, {vr(acc2(base,1-keep,nb))} offset:{n*8192 + nb*1024}')
    A('s_waitcnt lgkmcnt(0)\ns_barrier')
    for n, base in enumerate(bases):
        for nb in range(8): A(f'ds_read_b128 {vr(acc2(base,1-keep,nb))}, v11 offset:{n*8192 + nb*1024}')
        for nb in range(8):
            A(f's_waitcnt lgkmcnt({7-nb})')
            for r in range(4): A(f'v_add_f32 v{acc2(base,keep,nb)+r}, v{acc2(base,keep,nb)+r}, v{acc2(base,1-keep,nb)+r}')

def gen_p2():
    A = Asm()
    A(kernel_header('p2_kernel'))
    A('s_cmp_ge_u32 s2, 256\ns_cbranch_scc1 P2_done')
    A('s_load_dwordx2 s[48:49], s[0:1], 0\ns_load_dwordx2 s[50:51], s[0:1], 24\ns_load_dwordx4 s[52:55], s[0:1], 56\ns_load_dwordx4 s[56:59], s[0:1], 72')
    A('v_lshrrev_b32 v2, 6, v0\nv_and_b32 v1, 63, v0\nv_readfirstlane_b32 s18, v2')
    A('s_and_b32 s40, s2, 7\ns_lshr_b32 s41, s2, 3\ns_and_b32 s23, s40, 1')
    A('s_lshr_b32 s21, s40, 1\ns_lshl_b32 s21, s21, 2\ns_and_b32 s42, s41, 3\ns_add_u32 s21, s21, s42\ns_lshr_b32 s22, s41, 2')
    A('s_and_b32 s19, s18, 3\ns_lshr_b32 s20, s18, 2')
    A('v_lshrrev_b32 v11, 4, v1\nv_and_b32 v13, 15, v1')
    A(f's_lshl_b32 s40, s21, 3\ns_lshl_b32 s41, s19, 1\ns_add_u32 s40, s40, s41\ns_mul_i32 s40, s40, 144\ns_add_u32 s40, s40, s20\ns_lshl_b32 s40, s40, 10')
    A(f'v_lshlrev_b32 v2, 4, v1\nv_add_u32 v2, s40, v2\nv_add_u32 v3, {144*1024}, v2')
    A('v_lshlrev_b32 v4, 14, v11\nv_lshl_add_u32 v4, v13, 4, v4\ns_lshl_b32 s40, s18, 11\ns_lshl_b32 s41, s22, 8\ns_add_u32 s40, s40, s41\nv_add_u32 v4, s40, v4')
    A('v_and_b32 v12, 1, v11\nv_lshrrev_b32 v14, 2, v13\nv_lshl_add_u32 v12, v12, 2, v14\nv_mul_u32_u24 v7, 1056, v12')
    A(f'v_lshrrev_b32 v12, 1, v11\nv_lshl_add_u32 v7, v12, 8, v7\nv_and_b32 v12, 3, v1\nv_lshl_add_u32 v7, v12, 3, v7\ns_mul_i32 s40, s20, {SLAB}\nv_add_u32 v7, s40, v7')
    A('s_mul_i32 s39, s18, 1056\ns_mov_b32 s33, 0\ns_mov_b32 s34, 0')
    for r in range(128, 256): A(f'v_mov_b32 v{r}, 0')
    A('s_waitcnt lgkmcnt(0)')
    srd(A, 12, 58, WS_USED); srd(A, 8, 52, 3584 * 2048)
    A(f's_add_u32 s4, s58, {U_OFF}\ns_addc_u32 s5, s59, 0\ns_and_b32 s5, s5, 0xffff\ns_mov_b32 s6, {128*144*1024}\ns_mov_b32 s7, 0x20000')
    A(f's_mov_b32 s24, s50\ns_and_b32 s25, s51, 0xffff\ns_mov_b32 s26, {1024*2048}\ns_mov_b64 s[16:17], s[56:57]')
    A('s_cmp_eq_u32 s23, 0\ns_cbranch_scc0 P2_B')
    nA = KA // 2; phA = (-nA) % 4; nB = (112 - KA) // 2; phB = (-nB) % 4
    A(f's_mov_b32 s37, 0\ns_mov_b32 s27, {KA}\ns_mov_b32 s35, 0\ns_mov_b32 s36, 0\ns_mov_b32 s28, {KA*1024}\ns_mov_b32 s29, {(nA+3)//4}')
    p2_prologue(A, phA)
    A(f's_branch P2_Y{phA}')
    A('P2_B:')
    A(f's_mov_b32 s37, {KA}\ns_mov_b32 s27, 144\ns_mov_b32 s35, {KA*65536}\ns_mov_b32 s36, {KA*1024}\ns_mov_b32 s28, {144*1024}\ns_mov_b32 s29, {(nB+3)//4}')
    p2_prologue(A, phB)
    A(f's_branch P2_Y{phB}')
    p2_loop(A, 128, 'Y')
    A('s_cmp_eq_u32 s23, 0\ns_cbranch_scc1 P2_epi')
    A('s_mov_b32 s29, 4')
    p2_loop(A, 192, 'S')
    A('P2_epi:')
    A('s_xor_b32 s40, s18, 4\ns_lshl_b32 s40, s40, 14\ns_lshl_b32 s41, s18, 14\nv_lshlrev_b32 v5, 4, v1\nv_add_u32 v10, s40, v5\nv_add_u32 v11, s41, v5')
    A(f's_lshl_b32 s40, s21, 3\ns_add_u32 s40, s40, s22\ns_lshl_b32 s46, s40, 16\ns_lshl_b32 s41, s18, 13\ns_add_u32 s46, s46, s41\ns_add_u32 s46, s46, {YP_OFF}')
    A('s_add_u32 s47, s46, 4096\ns_lshr_b32 s41, s40, 1\ns_lshl_b32 s41, s41, 2\ns_and_b32 s30, s40, 1\ns_lshl_b32 s30, s30, 4')
    A('s_waitcnt vmcnt(0) lgkmcnt(0)\ns_barrier')
    A('s_cmp_eq_u32 s23, 0\ns_cbranch_scc0 P2_epiB')
    for keep in range(2):
        if keep == 0: A('s_cmp_eq_u32 s20, 0\ns_cbranch_scc0 P2_A1')
        else: A('P2_A1:')
        p2_exchange(A, [128], keep)
        for nb in range(8):
            A(f'buffer_store_dwordx4 {vr(acc2(128,keep,nb))}, v5, s[12:15], s{46 + nb//4} offen offset:{1024*(nb%4)} sc1')
        if keep == 0: A('s_branch P2_A2')
    A('P2_A2:')
    A('s_waitcnt vmcnt(0)\ns_barrier\ns_cmp_lg_u32 s18, 0\ns_cbranch_scc1 P2_done')
    A('s_lshl_b32 s42, 1, s30\nv_mov_b32 v11, s41\nv_mov_b32 v12, s42\ns_mov_b64 exec, 1\nglobal_atomic_add v11, v12, s[16:17] sc1\ns_endpgm')
    A('P2_epiB:')
    srd(A, 60, 48, 4 << 20); srd(A, 64, 54, 4 << 20)
    A('s_lshl_b32 s42, s21, 7\ns_lshl_b32 s43, s19, 5\ns_add_u32 s42, s42, s43\ns_lshl_b32 s43, s20, 4\ns_add_u32 s42, s42, s43\ns_lshl_b32 s42, s42, 11\n'
      's_lshl_b32 s43, s22, 8\ns_add_u32 s42, s42, s43')
    A('v_lshrrev_b32 v14, 4, v1\nv_and_b32 v13, 15, v1\nv_lshlrev_b32 v13, 11, v13\nv_lshl_add_u32 v6, v14, 3, v13')
    A('v_and_b32 v15, 1, v14\nv_lshrrev_b32 v14, 1, v14\nv_lshl_add_u32 v13, v15, 5, v13\nv_lshl_add_u32 v8, v14, 4, v13')
    for nb in range(8): A(f'buffer_load_dwordx2 {vr(16+2*nb,2)}, v6, s[60:63], s42 offen offset:{32*nb}')
    for keep in range(2):
        if keep == 0: A('s_cmp_eq_u32 s20, 0\ns_cbranch_scc0 P2_B1')
        else: A('P2_B1:')
        p2_exchange(A, [192, 128], keep)
        A('v_mov_b32 v11, s41')
        poll(A, f'P2_y{keep}', None, 's30', 0xffff, 1)
        for nb in range(8):
            A(f'buffer_load_dwordx4 {vr(32+4*nb)}, v5, s[12:15], s{46 + nb//4} offen offset:{1024*(nb%4)} sc1')
        A(f's_mov_b32 s43, {NLOG2E}')
        for pr in range(4):
            A(f's_waitcnt vmcnt({6-2*pr + pr})')
            els = [(acc2(128,keep,nb)+r, acc2(192,keep,nb)+r, 32+4*nb+r, 16+2*nb+r//2, r & 1) for nb in (2*pr, 2*pr+1) for r in range(4)]
            T = 64 + 16 * (pr & 1); X = T + 8; D = 96 + 4 * pr
            for e, (y, s, yp, xr, hi) in enumerate(els): A(f'v_add_f32 v{y}, v{y}, v{yp}')
            for e, (y, s, yp, xr, hi) in enumerate(els): A(f'v_mul_f32 v{T+e}, s43, v{y}')
            for e in range(8): A(f'v_exp_f32 v{T+e}, v{T+e}')
            for e, (y, s, yp, xr, hi) in enumerate(els):
                A(f'v_and_b32 v{X+e}, 0xffff0000, v{xr}' if hi else f'v_lshlrev_b32 v{X+e}, 16, v{xr}')
            for e in range(8): A(f'v_add_f32 v{T+e}, 1.0, v{T+e}')
            for e in range(8): A(f'v_rcp_f32 v{T+e}, v{T+e}')
            for e, (y, s, yp, xr, hi) in enumerate(els): A(f'v_mul_f32 v{y}, v{y}, v{s}')
            for e, (y, s, yp, xr, hi) in enumerate(els): A(f'v_fma_f32 v{X+e}, v{y}, v{T+e}, v{X+e}')
            for q in range(4): A(f'v_cvt_pk_bf16_f32 v{D+q}, v{X+2*q}, v{X+2*q+1}')
            A(f'v_permlane16_swap_b32 v{D}, v{D+2}\nv_permlane16_swap_b32 v{D+1}, v{D+3}')
            A(f'buffer_store_dwordx4 {vr(D)}, v8, s[64:67], s42 offen offset:{64*pr}')
        A('s_endpgm')
    A('P2_done:\ns_endpgm')
    A.fix()
    return A.text(), kernel_desc('p2_kernel', 256)

def main():
    k0, d0 = gen_k0(); p1, d1 = gen_p1(); p2, d2 = gen_p2()
    hdr = open('recurrent_scan__linear_kernel_hedgehog__dense_activation_mish__prompt.s.ref').read().split('\n')
    hdr = [l for l in hdr if l.startswith(';   offset') or l.startswith('; Kernarg')]
    out = hdr + ['; generated by gen/gen.py (own generator)']
    which = opt('k', '012')
    if '0' in which: out.append('; @launch kernel=ln_kernel grid=(256,1,1) block=(512,1,1) lds=0')
    if '1' in which: out.append(f'; @launch kernel=p1_kernel grid=(256,1,1) block=(512,1,1) lds={P1_LDS}')
    if '2' in which: out.append(f'; @launch kernel=p2_kernel grid=(256,1,1) block=(512,1,1) lds={P2_LDS}')
    out += ['.amdgcn_target "amdgcn-amd-amdhsa--gfx950"', '.text', k0, p1, p2, '.section .rodata,"a"', d0, d1, d2]
    print('\n'.join(out))
main()
```

```python
import sys
sys.path.insert(0, 'gen')
from asmlib import *

OPT = dict(a.split('=') for a in sys.argv[1:] if '=' in a)
def opt(k, d): return type(d)(OPT.get(k, d))

XN_OFF  = 0
U_OFF   = 4 << 20
KVP_OFF = 24 << 20
ZP_OFF  = 27 << 20
YP_OFF  = 28 << 20
WS_USED = 40 << 20
LOG2E = 0x3fb8aa3b
NLOG2E = 0xbfb8aa3b
EPS_LN = 0x3727c5ac
EPS_DEN = 0x358637bd

STAMP = opt('stamp', 0)
STAMP_OFF = 38 << 20
def stamp(A, n):
    if STAMP:
        A(f's_memrealtime s[{70+2*n}:{71+2*n}]')
        if n in (1, 2): A(f's_memtime s[{80+2*n}:{81+2*n}]')
def stamp_out(A, kid, nst, wave_s='s18', srd0=12):
    if not STAMP: return
    stamp(A, nst - 1)
    A(f's_waitcnt lgkmcnt(0)\ns_lshl_b32 s68, s2, 3\ns_add_u32 s68, s68, {wave_s}\ns_lshl_b32 s68, s68, 5\ns_add_u32 s68, s68, {STAMP_OFF + kid*65536}')
    A('s_mov_b64 exec, 1\nv_mov_b32 v0, 0')
    for n in range(8 if nst > 2 else nst):
        A(f'v_mov_b32 v9, s{70+2*n}\nbuffer_store_dword v9, v0, s[{srd0}:{srd0+3}], s68 offen offset:{4*n}')
    A('s_mov_b64 exec, -1')

def srd(A, base, ptr, nbytes):
    A(f's_mov_b32 s{base}, s{ptr}\ns_and_b32 s{base+1}, s{ptr+1}, 0xffff\ns_mov_b32 s{base+2}, {nbytes}\ns_mov_b32 s{base+3}, 0x20000')

def allreduce64(A, v, t, op):
    for r in (8, 4, 2, 1):
        A(f'{op}_dpp v{v}, v{v}, v{v} row_ror:{r} row_mask:0xf bank_mask:0xf')
    A(f'v_mov_b32 v{t}, v{v}\nv_permlane16_swap_b32 v{v}, v{t}\n{op} v{v}, v{v}, v{t}')
    A(f'v_mov_b32 v{t}, v{v}\nv_permlane32_swap_b32 v{v}, v{t}\n{op} v{v}, v{v}, v{t}')

def gen_k0():
    A = Asm()
    A(kernel_header('ln_kernel'))
    A('s_cmp_ge_u32 s2, 256\ns_cbranch_scc1 K0_done')
    stamp(A, 0)
    A('s_load_dwordx2 s[16:17], s[0:1], 0\ns_load_dwordx2 s[18:19], s[0:1], 80')
    A('v_lshrrev_b32 v2, 6, v0\nv_and_b32 v1, 63, v0')
    A('s_lshl_b32 s3, s2, 14\nv_lshlrev_b32 v2, 11, v2\nv_lshl_add_u32 v1, v1, 4, v2\nv_add_u32 v1, s3, v1')
    A('s_waitcnt lgkmcnt(0)')
    srd(A, 4, 16, 4 << 20); srd(A, 8, 18, 4 << 20)
    A('buffer_load_dwordx4 v[4:7], v1, s[4:7], 0 offen\nbuffer_load_dwordx4 v[8:11], v1, s[4:7], 0 offen offset:1024')
    A('s_waitcnt vmcnt(0)')
    for i in range(8):
        A(f'v_lshlrev_b32 v{16+2*i}, 16, v{4+i}\nv_and_b32 v{17+2*i}, 0xffff0000, v{4+i}')
    A('v_add_f32 v12, v16, v17')
    for i in range(2, 16): A(f'v_add_f32 v12, v12, v{16+i}')
    allreduce64(A, 12, 13, 'v_add_f32')
    A('v_mul_f32 v12, 0x3a800000, v12')
    A('v_sub_f32 v14, v16, v12\nv_mul_f32 v15, v14, v14')
    for i in range(1, 16): A(f'v_sub_f32 v14, v{16+i}, v12\nv_fmac_f32 v15, v14, v14')
    allreduce64(A, 15, 13, 'v_add_f32')
    A('v_mul_f32 v15, 0x3a800000, v15')
    def rb(v): A(f'v_cvt_pk_bf16_f32 v{v}, v{v}, v{v}\nv_lshlrev_b32 v{v}, 16, v{v}')
    rb(12); rb(15)
    A(f'v_add_f32 v15, {EPS_LN}, v15'); rb(15)
    A('v_sqrt_f32 v15, v15'); rb(15)
    A('v_rcp_f32 v15, v15')
    for i in range(16): A(f'v_sub_f32 v{16+i}, v{16+i}, v12')
    for i in range(16): A(f'v_mul_f32 v{16+i}, v{16+i}, v15')
    for i in range(8): A(f'v_cvt_pk_bf16_f32 v{4+i}, v{16+2*i}, v{17+2*i}')
    A('buffer_store_dwordx4 v[4:7], v1, s[8:11], 0 offen\nbuffer_store_dwordx4 v[8:11], v1, s[8:11], 0 offen offset:1024')
    if STAMP:
        A('v_lshrrev_b32 v2, 6, v0\nv_readfirstlane_b32 s20, v2\ns_waitcnt vmcnt(0)'); srd(A, 12, 18, WS_USED); stamp_out(A, 0, 2, 's20')
    A('K0_done:\ns_endpgm')
    A.fix()
    return A.text(), kernel_desc('ln_kernel', 32, 96)

WSLOT = 14464; WGRP = 1808; XB = 4 * WSLOT; XSLOT = 32768
P1_LDS = XB + 3 * XSLOT + 4096
def acc1(sb, i): return 128 + (i * 4 + sb) * 4
def vr(b, n=4): return f'v[{b}:{b+n-1}]'

def interleave(mf, others, first=0, last_free=0):
    out = []; n = len(mf) - first - last_free; k = 0
    for i, m in enumerate(mf):
        out.append(m)
        if i >= first:
            want = min(len(others), ((i - first + 1) * len(others) + n - 1) // n)
            while k < want:
                out.append(others[k]); k += 1
    out += others[k:]
    return out

def p1_iter(A, NB, half, tag):
    ws_m = 64 + 32 * half; xs_m = 32 + 16 * half
    ws_r = 64 + 32 * (1 - half); xs_r = 32 + 16 * (1 - half)
    A('s_waitcnt vmcnt(8) lgkmcnt(0)')
    if not opt('nobar', 0): A('s_barrier')
    if half == 0: A('v_add_u32 v8, s30, v6\nv_add_u32 v9, s33, v7'); woff = WSLOT
    else:         A('v_add_u32 v8, s31, v5\nv_add_u32 v9, s34, v7'); woff = 0
    mf = [f'v_mfma_f32_16x16x32_bf16 {vr(acc1(sb,i))}, {vr(ws_m+4*i)}, {vr(xs_m+4*sb)}, {vr(acc1(sb,i))}'
          for i in range(NB) for sb in range(4)]
    if opt('mf32', 0):
        mf = [f'v_mfma_f32_32x32x16_bf16 {vr(128+16*(2*(i//2)+sb),16)}, {vr(ws_m+4*i)}, {vr(xs_m+4*(2*(i%2)+sb))}, {vr(128+16*(2*(i//2)+sb),16)}' for kk in (0,1) for i in range(kk, NB, 2) for sb in range(2)]
    rd = []
    for i in range(NB):
        for h in range(2):
            rd.append(f'ds_read_b64_tr_b16 {vr(ws_r+4*i+2*h,2)}, v9 offset:{woff + WGRP*h + 32*i}')
        if i < 4: rd.append(f'ds_read_b128 {vr(xs_r+4*i)}, v8 offset:{2048*i}')
    if half == 0:
        dma = ['s_cmp_ge_u32 s37, 14\ns_cselect_b32 s10, 0, s10\ns_add_u32 m0, s33, s39\ns_mov_b64 exec, s[28:29]\n'
               'buffer_load_dwordx4 v4, s[8:11], s35 offen lds\ns_mov_b64 exec, -1',
               's_add_u32 m0, m0, s26\ns_add_u32 s40, s35, s24\ns_mov_b64 exec, s[28:29]\n'
               'buffer_load_dwordx4 v4, s[8:11], s40 offen lds\ns_mov_b64 exec, -1\ns_add_u32 s35, s35, s25',
               's_add_u32 s41, s38, 2048\ns_add_u32 m0, s32, s41\ns_add_u32 s40, s36, 32768\n'
               'buffer_load_dwordx4 v2, s[4:7], s40 offen lds',
               's_add_u32 m0, m0, 1024\ns_nop 0\nbuffer_load_dwordx4 v3, s[4:7], s40 offen lds']
    else:
        dma = [f's_add_u32 s41, s33, {WSLOT}\ns_add_u32 m0, s41, s39\ns_mov_b64 exec, s[28:29]\n'
               'buffer_load_dwordx4 v4, s[8:11], s35 offen lds\ns_mov_b64 exec, -1',
               's_add_u32 m0, m0, s26\ns_add_u32 s40, s35, s24\ns_mov_b64 exec, s[28:29]\n'
               'buffer_load_dwordx4 v4, s[8:11], s40 offen lds\ns_mov_b64 exec, -1\ns_add_u32 s35, s35, s25',
               's_cmp_ge_u32 s37, 13\ns_cselect_b32 s6, 0, s6\ns_add_u32 m0, s30, s38\ns_add_u32 s40, s36, 128\n'
               'buffer_load_dwordx4 v2, s[4:7], s40 offen lds',
               's_add_u32 m0, m0, 1024\ns_nop 0\nbuffer_load_dwordx4 v3, s[4:7], s40 offen lds',
               's_mov_b32 s40, s30\ns_mov_b32 s30, s31\ns_mov_b32 s31, s32\ns_mov_b32 s32, s40\n'
               's_mov_b32 s40, s33\ns_mov_b32 s33, s34\ns_mov_b32 s34, s40\ns_add_u32 s36, s36, 128\ns_add_u32 s37, s37, 1']
    if opt('nodma', 0): dma = ['\n'.join(l for l in d.split('\n') if 'buffer_load' not in l) for d in dma]
    if opt('nords', 0): rd = ['s_nop 0'] * len(rd)
    if opt('rdskip', 0): rd = rd[:len(rd) - 2 * (NB // 2)]
    if opt('x_nodma', 0): dma = ['\n'.join(l for l in d.split('\n') if not ('buffer_load' in l and 's[4:7]' in l)) for d in dma]
    others = []; step = max(1, len(rd) // 4); k = 0
    for n, r in enumerate(rd):
        others.append(r)
        if (n + 1) % step == 0 and k < 4: others.append(dma[k]); k += 1
    others += dma[k:]
    if opt('nomfma', 0): mf = ['s_nop 0'] * len(mf)
    for s in interleave(mf, others, 0, opt('p1_tailfree', 4) // (2 if opt('mf32', 0) else 1)): A(s)

def p1_loop(A, NB, tag):
    stamp(A, 1)
    A(f'P1_loop{tag}:')
    if opt('pf', 1):
        A(f's_cmp_eq_u32 s37, s47\ns_cbranch_scc0 P1_nopf{tag}\nbuffer_load_dword v11, v10, s[64:67], 0 offen\nP1_nopf{tag}:')
    p1_iter(A, NB, 0, tag); p1_iter(A, NB, 1, tag)
    A(f's_cmp_lt_u32 s37, 16\ns_cbranch_scc1 P1_loop{tag}')
    stamp(A, 2)

def p1_first_frags(A, NB):
    A('s_waitcnt vmcnt(12)\ns_barrier')
    A('v_add_u32 v8, s30, v5')
    for i in range(NB):
        for h in range(2): A(f'ds_read_b64_tr_b16 {vr(64+4*i+2*h,2)}, v7 offset:{WGRP*h + 32*i}')
    for sb in range(4): A(f'ds_read_b128 {vr(32+4*sb)}, v8 offset:{2048*sb}')

def mish_epilogue(A, NB):
    A('s_waitcnt lgkmcnt(0)')
    A('s_lshl_b32 s40, s21, 4\ns_lshl_b32 s41, s19, 2\ns_add_u32 s40, s40, s41\ns_mul_i32 s40, s40, 144\n'
      's_mul_i32 s41, s22, 7\ns_add_u32 s40, s40, s41\ns_lshl_b32 s41, s20, 2\ns_add_u32 s40, s40, s41\n'
      f's_lshl_b32 s40, s40, 10\ns_add_u32 s40, s40, {U_OFF}\ns_mov_b32 s42, {LOG2E}')
    A('v_lshlrev_b32 v10, 4, v1')
    n = 0
    for sb in range(4):
        for p in range(NB // 2):
            a = [acc1(sb, 2*p) + r for r in range(4)] + [acc1(sb, 2*p+1) + r for r in range(4)]
            T = 32 + 16 * (n % 2); Uu = T + 8; D = 64 + 4 * (n % 4); n += 1
            for e in range(8): A(f'v_mul_f32 v{T+e}, s42, v{a[e]}')
            for e in range(8): A(f'v_exp_f32 v{T+e}, v{T+e}')
            for e in range(8): A(f'v_fma_f32 v{Uu+e}, v{T+e}, 0.5, 1.0')
            for e in range(8): A(f'v_fma_f32 v{T+e}, v{T+e}, v{Uu+e}, 1.0')
            for e in range(8): A(f'v_rcp_f32 v{T+e}, v{T+e}')
            for e in range(8): A(f'v_fma_f32 v{T+e}, -v{a[e]}, v{T+e}, v{a[e]}')
            for e in range(4): A(f'v_cvt_pk_bf16_f32 v{D+e}, v{T+2*e}, v{T+2*e+1}')
            A(f'buffer_store_dwordx4 {vr(D)}, v10, s[12:15], s40 offen offset:{1024*p}')
        if sb < 3: A(f's_add_u32 s40, s40, {144*1024}')
    stamp(A, 3); stamp(A, 4)
    if STAMP: A('s_waitcnt vmcnt(0)')
    stamp_out(A, 1, 6)

def pair_reduce(A, items, op):
    for a, b, t in items: A(f'v_permlane32_swap_b32 v{a}, v{b}')
    for a, b, t in items: A(f'{op} v{a}, v{a}, v{b}')
    for a, b, t in items: A(f'v_mov_b32 v{b}, v{a}')
    for a, b, t in items: A(f'v_permlane16_swap_b32 v{a}, v{b}')
    for a, b, t in items: A(f'{op} v{a}, v{a}, v{b}')
    for a, b, t in items: A(f'v_mov_b32 v{t}, v{a}')
    for a, b, t in items: A(f'v_permlane32_swap_b32 v{a}, v{t}')

def phi(A, b0, out):
    BF = 96; P = 32
    for sb in range(4):
        for q in range(4):
            s = acc1(sb, b0 + q // 2) + 2 * (q % 2)
            A(f'v_cvt_pk_bf16_f32 v{BF+4*sb+q}, v{s}, v{s+1}')
    for sb in range(4):
        for fb in range(2):
            A(f'v_mfma_f32_16x16x32_bf16 {vr(P+16*sb+4*fb)}, {vr(224+4*fb)}, {vr(BF+4*sb)}, 0')
    MX = lambda sb: 12 + 3 * sb; NM = lambda sb: 13 + 3 * sb; TT = lambda sb: 14 + 3 * sb
    for sb in range(4):
        p = P + 16 * sb
        A(f'v_max3_f32 v{MX(sb)}, v{p}, v{p+1}, v{p+2}\nv_max3_f32 v{NM(sb)}, -v{p}, -v{p+1}, -v{p+2}')
    for k in (3, 5):
        for sb in range(4):
            p = P + 16 * sb
            A(f'v_max3_f32 v{MX(sb)}, v{MX(sb)}, v{p+k}, v{p+k+1}\nv_max3_f32 v{NM(sb)}, v{NM(sb)}, -v{p+k}, -v{p+k+1}')
    for sb in range(4):
        p = P + 16 * sb
        A(f'v_max_f32 v{MX(sb)}, v{MX(sb)}, v{p+7}\nv_max_f32_e64 v{NM(sb)}, v{NM(sb)}, -v{p+7}')
    pair_reduce(A, [(MX(sb), NM(sb), TT(sb)) for sb in range(4)], 'v_max_f32')
    for sb in range(4):
        A(f'v_mul_f32 v{MX(sb)}, s43, v{MX(sb)}\nv_mul_f32 v{TT(sb)}, s43, v{TT(sb)}')
    for sb in range(4):
        p = P + 16 * sb
        for e in range(8): A(f'v_fma_f32 v{p+8+e}, v{p+e}, s43, v{TT(sb)}')
        for e in range(8): A(f'v_fma_f32 v{p+e}, v{p+e}, s42, v{MX(sb)}')
        for e in range(16): A(f'v_exp_f32 v{p+e}, v{p+e}')
    for sb in range(4):
        p = P + 16 * sb
        A(f'v_add_f32 v{MX(sb)}, v{p}, v{p+1}\nv_add_f32 v{NM(sb)}, v{p+8}, v{p+9}')
        for e in range(2, 8): A(f'v_add_f32 v{MX(sb)}, v{MX(sb)}, v{p+e}\nv_add_f32 v{NM(sb)}, v{NM(sb)}, v{p+8+e}')
    pair_reduce(A, [(MX(sb), NM(sb), TT(sb)) for sb in range(4)], 'v_add_f32')
    for sb in range(4): A(f'v_rcp_f32 v{MX(sb)}, v{MX(sb)}\nv_rcp_f32 v{TT(sb)}, v{TT(sb)}')
    for sb in range(4):
        p = P + 16 * sb
        for e in range(8): A(f'v_mul_f32 v{p+e}, v{p+e}, v{MX(sb)}')
        for e in range(8): A(f'v_mul_f32 v{p+8+e}, v{p+8+e}, v{TT(sb)}')
        for sign in range(2):
            for q in range(4):
                A(f'v_cvt_pk_bf16_f32 v{out(sb,sign)+q}, v{p+8*sign+2*q}, v{p+8*sign+2*q+1}')

PH_ROW = 136; PH_HEAD = 256 * PH_ROW; V_ROW = 72; V_HEAD = 256 * V_ROW; VB = 2 * PH_HEAD
def poll(A, tag, word_sgpr_off, shift_s, mask, target):
    A(f's_mov_b32 s44, 0\n{tag}_spin:')
    A(f'global_load_dword v12, v11, s[16:17] sc1\ns_waitcnt vmcnt(0)\nv_readfirstlane_b32 s45, v12')
    if shift_s: A(f's_lshr_b32 s45, s45, {shift_s}')
    A(f's_and_b32 s45, s45, {mask}\ns_cmp_ge_u32 s45, {target}\ns_cbranch_scc1 {tag}_ok')
    A(f's_sleep 2\ns_add_u32 s44, s44, 1\ns_cmp_lt_u32 s44, 0x20000\ns_cbranch_scc1 {tag}_spin\n{tag}_ok:')

def qkv_epilogue(A):
    A(f's_waitcnt vmcnt(0) lgkmcnt(0)\ns_barrier\ns_mov_b32 s42, {LOG2E}\ns_mov_b32 s43, {NLOG2E}')
    A('v_and_b32 v24, 15, v1\nv_lshrrev_b32 v25, 4, v1\ns_lshl_b32 s40, s19, 6\nv_add_u32 v26, s40, v24')
    A(f'v_mul_u32_u24 v27, {V_ROW}, v26\nv_mul_u32_u24 v26, {PH_ROW}, v26\nv_lshl_add_u32 v26, v25, 3, v26\nv_lshl_add_u32 v27, v25, 3, v27')
    A(f's_mul_i32 s40, s20, {PH_HEAD}\nv_add_u32 v26, s40, v26\ns_mul_i32 s40, s20, {V_HEAD}\ns_add_u32 s40, s40, {VB}\nv_add_u32 v27, s40, v27')
    for sb in range(4):
        for db in range(2):
            s = acc1(sb, 4 + db); d = 112 + 4 * sb + 2 * db
            A(f'v_cvt_pk_bf16_f32 v{d}, v{s}, v{s+1}\nv_cvt_pk_bf16_f32 v{d+1}, v{s+2}, v{s+3}')
            A(f'ds_write_b64 v27, {vr(d,2)} offset:{sb*16*V_ROW + 32*db}')
    outk = lambda sb, sign: acc1(0, 4) + 8 * sb + 4 * sign
    phi(A, 2, outk)
    for sb in range(4):
        for sign in range(2):
            for fb in range(2):
                A(f'ds_write_b64 v26, {vr(outk(sb,sign)+2*fb,2)} offset:{sb*16*PH_ROW + 64*sign + 32*fb}')
    A('v_lshrrev_b32 v28, 2, v24\nv_lshl_add_u32 v28, v25, 3, v28\nv_and_b32 v29, 3, v1')
    A(f'v_mul_u32_u24 v30, {V_ROW}, v28\nv_mul_u32_u24 v28, {PH_ROW}, v28\nv_lshl_add_u32 v28, v29, 3, v28\nv_lshl_add_u32 v30, v29, 3, v30')
    A(f's_mul_i32 s40, s20, {PH_HEAD}\ns_lshl_b32 s41, s19, 5\ns_add_u32 s40, s40, s41\nv_add_u32 v28, s40, v28')
    A(f's_mul_i32 s40, s20, {V_HEAD}\ns_add_u32 s40, s40, {VB}\nv_add_u32 v30, s40, v30')
    for q in range(4): A(f'v_mov_b32 v{232+q}, 0x3f803f80')
    A('s_waitcnt lgkmcnt(0)\ns_barrier')
    KV = 236
    def rd(u):
        b = 32 + 12 * (u % 4)
        for h in range(2): A(f'ds_read_b64_tr_b16 {vr(b+2*h,2)}, v28 offset:{(32*u+4*h)*PH_ROW}')
        for db in range(2):
            for h in range(2): A(f'ds_read_b64_tr_b16 {vr(b+4+4*db+2*h,2)}, v30 offset:{(32*u+4*h)*V_ROW + 32*db}')
    rd(0); rd(1)
    for u in range(8):
        A(f's_waitcnt lgkmcnt({6 if u < 7 else 0})')
        b = 32 + 12 * (u % 4)
        for k, bb in enumerate((vr(b+4), vr(b+8), vr(232))):
            c = '0' if u == 0 else vr(KV + 4*k)
            A(f'v_mfma_f32_16x16x32_bf16 {vr(KV+4*k)}, {vr(b)}, {bb}, {c}')
        if u + 2 < 8: rd(u + 2)
    A('s_lshl_b32 s40, s22, 3\ns_add_u32 s40, s40, s21\ns_lshl_b32 s40, s40, 3\ns_add_u32 s40, s40, s18')
    A(f's_lshl_b32 s41, s40, 11\ns_add_u32 s41, s41, {KVP_OFF}\ns_lshl_b32 s40, s40, 6\ns_add_u32 s40, s40, {ZP_OFF}')
    A('v_lshlrev_b32 v10, 4, v1\nv_lshlrev_b32 v31, 4, v25')
    A(f'buffer_store_dwordx4 {vr(KV)}, v10, s[12:15], s41 offen sc1\nbuffer_store_dwordx4 {vr(KV+4)}, v10, s[12:15], s41 offen offset:1024 sc1')
    A('v_cmp_eq_u32 vcc, 0, v24\ns_mov_b64 exec, vcc')
    A(f'buffer_store_dwordx4 {vr(KV+8)}, v31, s[12:15], s40 offen sc1\ns_mov_b64 exec, -1')
    A('s_lshl_b32 s46, s22, 2\nv_mov_b32 v11, s46')
    A('s_waitcnt vmcnt(0)\ns_barrier\ns_cmp_lg_u32 s18, 0\ns_cbranch_scc1 P1_nosig')
    A('v_mov_b32 v12, 1\ns_mov_b64 exec, 1\nglobal_atomic_add v11, v12, s[16:17] sc1\ns_mov_b64 exec, -1\nP1_nosig:')
    stamp(A, 3)
    outq = lambda sb, sign: acc1(0, 2) + 8 * sb + 4 * sign
    phi(A, 0, outq)
    poll(A, 'P1_kv', None, 0, 0xffff, 8)
    stamp(A, 4)
    A(f's_lshl_b32 s40, s22, 6\ns_add_u32 s40, s40, s18\ns_lshl_b32 s41, s40, 11\ns_add_u32 s41, s41, {KVP_OFF}\n'
      f's_lshl_b32 s40, s40, 6\ns_add_u32 s40, s40, {ZP_OFF}')
    for m in range(8):
        b = 32 + 12 * m
        A(f'buffer_load_dwordx4 {vr(b)}, v10, s[12:15], s41 offen sc1\nbuffer_load_dwordx4 {vr(b+4)}, v10, s[12:15], s41 offen offset:1024 sc1')
        A(f'buffer_load_dwordx4 {vr(b+8)}, v31, s[12:15], s40 offen offset:{512*m} sc1')
        if m < 7: A(f's_add_u32 s41, s41, {8*2048}')
    A('s_mul_i32 s40, s20, 6144\ns_lshr_b32 s41, s19, 1\ns_lshl_b32 s41, s41, 10\ns_add_u32 s41, s40, s41\n'
      's_and_b32 s44, s19, 1\ns_lshl_b32 s44, s44, 3\ns_add_u32 s41, s41, s44\nv_add_u32 v28, s41, v10\nv_add_u32 v29, s40, v10')
    for m in range(1, 8):
        A(f's_waitcnt vmcnt({3*(7-m)})')
        for e in range(12): A(f'v_add_f32 v{32+e}, v{32+e}, v{32+12*m+e}')
    for k in range(3):
        A(f'v_cvt_pk_bf16_f32 v{44+2*k}, v{32+4*k}, v{33+4*k}\nv_cvt_pk_bf16_f32 v{45+2*k}, v{34+4*k}, v{35+4*k}')
        A(f'ds_write_b64 v28, {vr(44+2*k,2)} offset:{2048*k}')
    A('s_waitcnt lgkmcnt(0)\ns_barrier')
    for k in range(3):
        for sign in range(2): A(f'ds_read_b128 {vr(52+8*k+4*sign)}, v29 offset:{2048*k + 1024*sign}')
    A('s_lshl_b32 s40, s21, 4\ns_lshl_b32 s41, s19, 2\ns_add_u32 s40, s40, s41\ns_mul_i32 s40, s40, 144\n'
      's_lshl_b32 s41, s22, 1\ns_add_u32 s40, s40, s41\ns_add_u32 s40, s40, s20\ns_add_u32 s40, s40, 112\n'
      f's_lshl_b32 s40, s40, 10\ns_add_u32 s40, s40, {U_OFF}\ns_mov_b32 s41, {EPS_DEN}')
    A('s_waitcnt lgkmcnt(0)')
    N = lambda sb, k: 76 + 12 * sb + 4 * k
    for sign in range(2):
        for sb in range(4):
            for k in range(3):
                c = '0' if sign == 0 else vr(N(sb, k))
                A(f'v_mfma_f32_16x16x32_bf16 {vr(N(sb,k))}, {vr(52+8*k+4*sign)}, {vr(outq(sb,sign))}, {c}')
    for sb in range(4): A(f'v_add_f32 v{N(sb,2)}, s41, v{N(sb,2)}')
    for sb in range(4): A(f'v_rcp_f32 v{N(sb,2)}, v{N(sb,2)}')
    for sb in range(4):
        for e in range(8): A(f'v_mul_f32 v{N(sb,0)+e}, v{N(sb,0)+e}, v{N(sb,2)}')
        for q in range(4): A(f'v_cvt_pk_bf16_f32 v{32+4*sb+q}, v{N(sb,0)+2*q}, v{N(sb,0)+2*q+1}')
        A(f'buffer_store_dwordx4 {vr(32+4*sb)}, v10, s[12:15], s40 offen')
        if sb < 3: A(f's_add_u32 s40, s40, {144*1024}')
    if STAMP: A('s_waitcnt vmcnt(0)')
    stamp_out(A, 1, 6)

def gen_p1():
    A = Asm()
    A(kernel_header('p1_kernel'))
    A('s_cmp_ge_u32 s2, 256\ns_cbranch_scc1 P1_done')
    stamp(A, 0)
    A('s_load_dwordx4 s[48:51], s[0:1], 8\ns_load_dwordx4 s[52:55], s[0:1], 40\ns_load_dwordx4 s[56:59], s[0:1], 72')
    A('s_load_dwordx2 s[64:65], s[0:1], 56\ns_load_dwordx2 s[66:67], s[0:1], 24')
    A('v_lshrrev_b32 v2, 6, v0\nv_and_b32 v1, 63, v0\nv_readfirstlane_b32 s18, v2')
    A('s_and_b32 s40, s2, 7\ns_lshr_b32 s41, s2, 3')
    A('s_and_b32 s21, s40, 1\ns_lshl_b32 s21, s21, 2\ns_and_b32 s42, s41, 3\ns_add_u32 s21, s21, s42')
    A('s_lshr_b32 s22, s40, 1\ns_lshl_b32 s22, s22, 2\ns_lshr_b32 s42, s41, 2\ns_and_b32 s43, s42, 3\ns_add_u32 s22, s22, s43\ns_lshr_b32 s23, s42, 2')
    A('s_and_b32 s19, s18, 3\ns_lshr_b32 s20, s18, 2')
    A('v_lshrrev_b32 v10, 3, v1\nv_lshlrev_b32 v10, 11, v10\nv_lshrrev_b32 v11, 4, v1\nv_and_b32 v12, 7, v1')
    A('v_xor_b32 v12, v12, v11\nv_lshl_add_u32 v2, v12, 4, v10\nv_xor_b32 v12, 4, v12\nv_lshl_add_u32 v3, v12, 4, v10')
    A('s_lshl_b32 s40, s21, 19\ns_lshl_b32 s41, s18, 16\ns_add_u32 s40, s40, s41\nv_add_u32 v2, s40, v2\ns_add_u32 s40, s40, 16384\nv_add_u32 v3, s40, v3')
    A('v_and_b32 v13, 15, v1\nv_lshrrev_b32 v12, 1, v13\nv_xor_b32 v12, v12, v11\nv_lshlrev_b32 v14, 7, v13')
    A('s_lshl_b32 s40, s19, 13\nv_add_u32 v14, s40, v14\nv_lshl_add_u32 v5, v12, 4, v14\nv_xor_b32 v12, 4, v12\nv_lshl_add_u32 v6, v12, 4, v14')
    A(f's_mov_b32 s30, {XB}\ns_mov_b32 s31, {XB+XSLOT}\ns_mov_b32 s32, {XB+2*XSLOT}\ns_mov_b32 s33, 0\ns_mov_b32 s34, {2*WSLOT}')
    A(f's_lshl_b32 s38, s18, 12\ns_mul_i32 s39, s18, {WGRP}\ns_mov_b32 s37, 0\ns_mov_b32 s36, 256')
    A(f'v_lshrrev_b32 v15, 2, v13\nv_and_b32 v12, 3, v1\nv_mul_u32_u24 v7, {2*WGRP}, v11\nv_lshl_add_u32 v7, v12, 3, v7')
    A('s_waitcnt lgkmcnt(0)')
    srd(A, 12, 58, WS_USED)
    A(f's_add_u32 s4, s58, {XN_OFF}\ns_addc_u32 s5, s59, 0\ns_and_b32 s5, s5, 0xffff\ns_mov_b32 s6, {4<<20}\ns_mov_b32 s7, 0x20000')
    A('s_mov_b64 s[16:17], s[56:57]')
    A(f's_mov_b32 s40, {3584*2048}\ns_cmp_eq_u32 s18, 4\ns_cselect_b32 s64, s66, s64\ns_cselect_b32 s65, s67, s65\ns_cselect_b32 s66, {1024*2048}, s40\n'
      's_cselect_b32 s40, 64, 224\ns_cselect_b32 s41, 0, s18\ns_and_b32 s65, s65, 0xffff\ns_mov_b32 s67, 0x20000')
    A('s_mul_i32 s40, s40, s2\ns_mul_i32 s41, s41, 56\ns_add_u32 s40, s40, s41\nv_add_u32 v10, s40, v1\nv_lshlrev_b32 v10, 7, v10')
    A(f's_lshl_b32 s47, s18, 1\ns_add_u32 s47, s47, {opt("pf0", 2)}\ns_cmp_gt_u32 s18, 4\ns_cselect_b32 s47, 99, s47')
    A('s_cmp_eq_u32 s23, 0\ns_cbranch_scc1 P1_qkv_setup')
    srd(A, 8, 52, 1024 * 7168); srd(A, 60, 54, 7168)
    A(f's_mov_b32 s24, {2*7168}\ns_mov_b32 s25, {32*7168}\ns_mov_b32 s26, 896\ns_mov_b32 s28, -1\ns_mov_b32 s29, 0x00ffffff')
    A('v_cmp_le_u32 vcc, 28, v1\nv_cndmask_b32 v12, 0, 1, vcc\nv_mul_u32_u24 v14, 28, v12\nv_sub_u32 v14, v1, v14')
    A('s_lshl_b32 s40, s18, 2\nv_add_u32 v12, s40, v12\nv_mul_u32_u24 v12, 7168, v12\nv_lshl_add_u32 v4, v14, 4, v12')
    A('s_mul_i32 s40, s22, 448\nv_add_u32 v4, s40, v4')
    A('v_mul_u32_u24 v12, 448, v15\nv_add_u32 v7, v7, v12\ns_lshl_b32 s41, s20, 8\nv_add_u32 v7, s41, v7')
    A('s_add_u32 s40, s40, s41\nv_lshlrev_b32 v12, 3, v11')
    for i in range(8): A(f'buffer_load_dwordx2 {vr(96+2*i,2)}, v12, s[60:63], s40 offen offset:{32*i}')
    A('s_branch P1_issue')
    A('P1_qkv_setup:')
    srd(A, 8, 48, 1024 * 6144); srd(A, 60, 50, 65536)
    A(f's_mov_b32 s24, {2*6144}\ns_mov_b32 s25, {32*6144}\ns_mov_b32 s26, 832\ns_mov_b32 s28, -1\ns_mov_b32 s29, 0x0000ffff')
    A('v_cmp_le_u32 vcc, 24, v1\nv_cndmask_b32 v12, 0, 1, vcc\nv_mul_u32_u24 v14, 24, v12\nv_sub_u32 v14, v1, v14')
    A('s_lshl_b32 s40, s18, 2\nv_add_u32 v12, s40, v12\nv_mul_u32_u24 v12, 6144, v12')
    A('v_cmp_le_u32 vcc, 12, v14\nv_cndmask_b32 v16, 0, 1, vcc\nv_mul_u32_u24 v17, 12, v16\nv_sub_u32 v14, v14, v17')
    A('v_lshl_add_u32 v12, v16, 6, v12\nv_lshrrev_b32 v17, 2, v14\nv_lshl_add_u32 v12, v17, 11, v12\nv_and_b32 v14, 3, v14\nv_lshl_add_u32 v4, v14, 4, v12')
    A('s_lshl_b32 s40, s22, 7\nv_add_u32 v4, s40, v4')
    A('v_and_b32 v12, 1, v15\nv_mul_u32_u24 v12, 384, v12\nv_lshrrev_b32 v14, 1, v15\nv_mul_u32_u24 v14, 832, v14\nv_add3_u32 v7, v7, v12, v14')
    A('s_mul_i32 s41, s20, 192\nv_add_u32 v7, s41, v7')
    A('s_lshl_b32 s40, s22, 1\ns_add_u32 s40, s40, s20\ns_lshl_b32 s40, s40, 11\nv_lshlrev_b32 v12, 8, v11\nv_lshl_add_u32 v12, v13, 1, v12')
    for fb in range(2):
        for j in range(8):
            A(f'buffer_load_ushort v{96+8*fb+j}, v12, s[60:63], s40 offen offset:{(j if j < 4 else 12 + j)*64 + 32*fb}')
    A('P1_issue:')
    def xdma(slot_s, slab, e):
        A(f's_add_u32 m0, s{slot_s}, s38\ns_mov_b32 s40, {slab*128 + e*32768}')
        if e: A('s_add_u32 m0, m0, 2048\ns_nop 0')
        A('buffer_load_dwordx4 v2, s[4:7], s40 offen lds\ns_add_u32 m0, m0, 1024\ns_nop 0\nbuffer_load_dwordx4 v3, s[4:7], s40 offen lds')
    def wdma(j):
        A(f's_add_u32 m0, s39, {j*WSLOT}\ns_mov_b64 exec, s[28:29]\nbuffer_load_dwordx4 v4, s[8:11], s35 offen lds\n'
          's_add_u32 m0, m0, s26\ns_add_u32 s40, s35, s24\nbuffer_load_dwordx4 v4, s[8:11], s40 offen lds\n'
          's_mov_b64 exec, -1\ns_add_u32 s35, s35, s25')
    A('s_mov_b32 s35, 0')
    xdma(30, 0, 0); xdma(30, 0, 1); wdma(0); wdma(1); xdma(31, 1, 0); xdma(31, 1, 1); wdma(2); wdma(3); xdma(32, 2, 0)
    A('s_waitcnt vmcnt(18)')
    A('s_cmp_eq_u32 s23, 0\ns_cbranch_scc1 P1_qkv_init')
    for i in range(8):
        a = acc1(0, i)
        A(f'v_lshlrev_b32 v{a}, 16, v{96+2*i}\nv_and_b32 v{a+1}, 0xffff0000, v{96+2*i}\n'
          f'v_lshlrev_b32 v{a+2}, 16, v{97+2*i}\nv_and_b32 v{a+3}, 0xffff0000, v{97+2*i}')
        for sb in range(1, 4):
            for r in range(4): A(f'v_mov_b32 v{acc1(sb,i)+r}, v{a+r}')
    A('s_cmp_eq_u32 s20, 0\ns_cbranch_scc0 P1_six')
    p1_first_frags(A, 8)
    p1_loop(A, 8, 'A')
    mish_epilogue(A, 8)
    A('s_endpgm')
    A('P1_qkv_init:')
    for q in range(8): A(f'v_lshl_or_b32 v{224+q}, v{97+2*q}, 16, v{96+2*q}')
    for r in range(128, 224): A(f'v_mov_b32 v{r}, 0')
    A('P1_six:')
    p1_first_frags(A, 6)
    p1_loop(A, 6, 'B')
    A('s_cmp_eq_u32 s23, 0\ns_cbranch_scc1 P1_qkv_epi')
    mish_epilogue(A, 6)
    A('s_endpgm')
    A('P1_qkv_epi:')
    qkv_epilogue(A)
    A('P1_done:\ns_endpgm')
    A.fix()
    return A.text(), kernel_desc('p1_kernel', 256)

KA = opt('KA', 70)
SLAB = 8448; SLOT2 = 2 * SLAB; R2 = 5
P2_LDS = 131072
def acc2(base, sb, nb): return base + (nb * 2 + sb) * 4

def p2_dma(adv=True):
    g0 = ('s_cmp_ge_u32 s37, s27\ns_cselect_b32 s10, 0, s10\ns_add_u32 m0, s33, s39\ns_add_u32 s40, s35, 65536\n'
          'buffer_load_dwordx4 v4, s[8:11], s35 offen lds')
    g1 = (f's_add_u32 m0, m0, {SLAB}\ns_add_u32 s35, s35, 131072\nbuffer_load_dwordx4 v4, s[8:11], s40 offen lds\n'
          f's_add_u32 s33, s33, {SLOT2}\ns_cmp_eq_u32 s33, {R2*SLOT2}\ns_cselect_b32 s33, 0, s33\n'
          's_add_u32 s37, s37, 2\ns_cmp_eq_u32 s37, 112\ns_cselect_b32 s8, s24, s8\ns_cselect_b32 s9, s25, s9\n'
          f's_cselect_b32 s10, s26, s10\ns_cselect_b32 s35, 0, s35')
    return [g0, g1]
def p2_act(st):
    b = 32 + 8 * st
    return (f's_cmp_ge_u32 s36, s28\ns_cselect_b32 s6, 0, s6\nbuffer_load_dwordx4 {vr(b)}, v2, s[4:7], s36 offen\n'
            f'buffer_load_dwordx4 {vr(b+4)}, v3, s[4:7], s36 offen\ns_add_u32 s36, s36, 2048')
def p2_reads(wset):
    return [f'ds_read_b64_tr_b16 {vr(wset+4*nb+2*h,2)}, v9 offset:{512*h + 32*nb}' for nb in range(8) for h in range(2)]
P2_RADV = f'v_add_u32 v9, s34, v7\ns_add_u32 s34, s34, {SLOT2}\ns_cmp_eq_u32 s34, {R2*SLOT2}\ns_cselect_b32 s34, 0, s34'

def p2_loop(A, base, tag):
    for ph in range(4):
        A(f'P2_{tag}{ph}:')
        wm = 64 + 32 * (ph & 1); wr = 64 + 32 * (1 - (ph & 1)); ab = 32 + 8 * ph
        A('s_waitcnt vmcnt(12) lgkmcnt(0)')
        if not opt('nobar', 0): A('s_barrier')
        A(P2_RADV)
        mf = [f'v_mfma_f32_16x16x32_bf16 {vr(acc2(base,sb,nb))}, {vr(wm+4*nb)}, {vr(ab+4*sb)}, {vr(acc2(base,sb,nb))}'
              for nb in range(8) for sb in range(2)]
        if opt('mf32', 0):
            mf = [f'v_mfma_f32_32x32x16_bf16 {vr(base+16*(nb//2),16)}, {vr(wm+4*nb)}, {vr(ab+4*(nb%2))}, {vr(base+16*(nb//2),16)}' for kk in (0,1) for nb in range(kk, 8, 2)]
        rd = p2_reads(wr); d = p2_dma()
        if opt('nodma', 0): d = ['\n'.join(l for l in x.split('\n') if 'buffer_load' not in l) for x in d]
        if opt('nords', 0): rd = ['s_nop 0'] * len(rd)
        others = rd[:6] + [d[0]] + rd[6:12] + [d[1]] + rd[12:]
        if opt('nomfma', 0): mf = ['s_nop 0'] * len(mf)
        for s in interleave(mf, others, 0, 1 if opt('mf32', 0) else 2): A(s)
        A(p2_act(ph) if not opt('noact', 0) else 's_nop 0')
    A(f's_sub_u32 s29, s29, 1\ns_cmp_lg_u32 s29, 0\ns_cbranch_scc1 P2_{tag}0')

def p2_prologue(A, ph0):
    d = p2_dma()
    A(d[0]); A(d[1])
    for m in range(4):
        A(d[0]); A(d[1]); A(p2_act((ph0 + m) % 4))
    A('s_waitcnt vmcnt(16)\ns_barrier')
    A(P2_RADV)
    for r in p2_reads(64 + 32 * (ph0 & 1)): A(r)
    stamp(A, 1)

def p2_exchange(A, bases, keep):
    for n, base in enumerate(bases):
        for nb in range(8): A(f'ds_write_b128 v10, {vr(acc2(base,1-keep,nb))} offset:{n*8192 + nb*1024}')
    A('s_waitcnt lgkmcnt(0)\ns_barrier')
    for n, base in enumerate(bases):
        for nb in range(8): A(f'ds_read_b128 {vr(acc2(base,1-keep,nb))}, v11 offset:{n*8192 + nb*1024}')
        for nb in range(8):
            A(f's_waitcnt lgkmcnt({7-nb})')
            for r in range(4): A(f'v_add_f32 v{acc2(base,keep,nb)+r}, v{acc2(base,keep,nb)+r}, v{acc2(base,1-keep,nb)+r}')

def gen_p2():
    A = Asm()
    A(kernel_header('p2_kernel'))
    A('s_cmp_ge_u32 s2, 256\ns_cbranch_scc1 P2_done')
    stamp(A, 0)
    A('s_load_dwordx2 s[48:49], s[0:1], 0\ns_load_dwordx2 s[50:51], s[0:1], 24\ns_load_dwordx4 s[52:55], s[0:1], 56\ns_load_dwordx4 s[56:59], s[0:1], 72')
    A('v_lshrrev_b32 v2, 6, v0\nv_and_b32 v1, 63, v0\nv_readfirstlane_b32 s18, v2')
    A('s_and_b32 s40, s2, 7\ns_lshr_b32 s41, s2, 3\ns_and_b32 s23, s40, 1')
    A('s_lshr_b32 s21, s40, 1\ns_lshl_b32 s21, s21, 2\ns_and_b32 s42, s41, 3\ns_add_u32 s21, s21, s42\ns_lshr_b32 s22, s41, 2')
    A('s_and_b32 s19, s18, 3\ns_lshr_b32 s20, s18, 2')
    A('v_lshrrev_b32 v11, 4, v1\nv_and_b32 v13, 15, v1')
    A(f's_lshl_b32 s40, s21, 3\ns_lshl_b32 s41, s19, 1\ns_add_u32 s40, s40, s41\ns_mul_i32 s40, s40, 144\ns_add_u32 s40, s40, s20\ns_lshl_b32 s40, s40, 10')
    A(f'v_lshlrev_b32 v2, 4, v1\nv_add_u32 v2, s40, v2\nv_add_u32 v3, {144*1024}, v2')
    A('v_lshlrev_b32 v4, 14, v11\nv_lshl_add_u32 v4, v13, 4, v4\ns_lshl_b32 s40, s18, 11\ns_lshl_b32 s41, s22, 8\ns_add_u32 s40, s40, s41\nv_add_u32 v4, s40, v4')
    A('v_and_b32 v12, 1, v11\nv_lshrrev_b32 v14, 2, v13\nv_lshl_add_u32 v12, v12, 2, v14\nv_mul_u32_u24 v7, 1056, v12')
    A(f'v_lshrrev_b32 v12, 1, v11\nv_lshl_add_u32 v7, v12, 8, v7\nv_and_b32 v12, 3, v1\nv_lshl_add_u32 v7, v12, 3, v7\ns_mul_i32 s40, s20, {SLAB}\nv_add_u32 v7, s40, v7')
    A('s_mul_i32 s39, s18, 1056\ns_mov_b32 s33, 0\ns_mov_b32 s34, 0')
    for r in range(128, 256): A(f'v_mov_b32 v{r}, 0')
    A('s_waitcnt lgkmcnt(0)')
    srd(A, 12, 58, WS_USED); srd(A, 8, 52, 3584 * 2048)
    A(f's_add_u32 s4, s58, {U_OFF}\ns_addc_u32 s5, s59, 0\ns_and_b32 s5, s5, 0xffff\ns_mov_b32 s6, {128*144*1024}\ns_mov_b32 s7, 0x20000')
    A(f's_mov_b32 s24, s50\ns_and_b32 s25, s51, 0xffff\ns_mov_b32 s26, {1024*2048}\ns_mov_b64 s[16:17], s[56:57]')
    A('s_cmp_eq_u32 s23, 0\ns_cbranch_scc0 P2_B')
    nA = KA // 2; phA = (-nA) % 4; nB = (112 - KA) // 2; phB = (-nB) % 4
    A(f's_mov_b32 s37, 0\ns_mov_b32 s27, {KA}\ns_mov_b32 s35, 0\ns_mov_b32 s36, 0\ns_mov_b32 s28, {KA*1024}\ns_mov_b32 s29, {(nA+3)//4}')
    p2_prologue(A, phA)
    A(f's_branch P2_Y{phA}')
    A('P2_B:')
    A(f's_mov_b32 s37, {KA}\ns_mov_b32 s27, 144\ns_mov_b32 s35, {KA*65536}\ns_mov_b32 s36, {KA*1024}\ns_mov_b32 s28, {144*1024}\ns_mov_b32 s29, {(nB+3)//4}')
    p2_prologue(A, phB)
    A(f's_branch P2_Y{phB}')
    p2_loop(A, 128, 'Y')
    A('s_cmp_eq_u32 s23, 0\ns_cbranch_scc1 P2_epi')
    A('s_mov_b32 s29, 4')
    p2_loop(A, 192, 'S')
    A('P2_epi:')
    stamp(A, 2)
    A('s_xor_b32 s40, s18, 4\ns_lshl_b32 s40, s40, 14\ns_lshl_b32 s41, s18, 14\nv_lshlrev_b32 v5, 4, v1\nv_add_u32 v10, s40, v5\nv_add_u32 v11, s41, v5')
    A(f's_lshl_b32 s40, s21, 3\ns_add_u32 s40, s40, s22\ns_lshl_b32 s46, s40, 16\ns_lshl_b32 s41, s18, 13\ns_add_u32 s46, s46, s41\ns_add_u32 s46, s46, {YP_OFF}')
    A('s_add_u32 s47, s46, 4096\ns_lshr_b32 s41, s40, 1\ns_lshl_b32 s41, s41, 2\ns_and_b32 s30, s40, 1\ns_lshl_b32 s30, s30, 4')
    A('s_waitcnt vmcnt(0) lgkmcnt(0)\ns_barrier')
    A('s_cmp_eq_u32 s23, 0\ns_cbranch_scc0 P2_epiB')
    for keep in range(2):
        if keep == 0: A('s_cmp_eq_u32 s20, 0\ns_cbranch_scc0 P2_A1')
        else: A('P2_A1:')
        p2_exchange(A, [128], keep)
        for nb in range(8):
            A(f'buffer_store_dwordx4 {vr(acc2(128,keep,nb))}, v5, s[12:15], s{46 + nb//4} offen offset:{1024*(nb%4)} sc1')
        if keep == 0: A('s_branch P2_A2')
    A('P2_A2:')
    stamp(A, 3); stamp(A, 4)
    A('s_waitcnt vmcnt(0)')
    stamp_out(A, 2, 6)
    A('s_barrier\ns_cmp_lg_u32 s18, 0\ns_cbranch_scc1 P2_done')
    A('s_lshl_b32 s42, 1, s30\nv_mov_b32 v11, s41\nv_mov_b32 v12, s42\ns_mov_b64 exec, 1\nglobal_atomic_add v11, v12, s[16:17] sc1\ns_endpgm')
    A('P2_epiB:')
    srd(A, 60, 48, 4 << 20); srd(A, 64, 54, 4 << 20)
    A('s_lshl_b32 s42, s21, 7\ns_lshl_b32 s43, s19, 5\ns_add_u32 s42, s42, s43\ns_lshl_b32 s43, s20, 4\ns_add_u32 s42, s42, s43\ns_lshl_b32 s42, s42, 11\n'
      's_lshl_b32 s43, s22, 8\ns_add_u32 s42, s42, s43')
    A('v_lshrrev_b32 v14, 4, v1\nv_and_b32 v13, 15, v1\nv_lshlrev_b32 v13, 11, v13\nv_lshl_add_u32 v6, v14, 3, v13')
    A('v_and_b32 v15, 1, v14\nv_lshrrev_b32 v14, 1, v14\nv_lshl_add_u32 v13, v15, 5, v13\nv_lshl_add_u32 v8, v14, 4, v13')
    for nb in range(8): A(f'buffer_load_dwordx2 {vr(16+2*nb,2)}, v6, s[60:63], s42 offen offset:{32*nb}')
    for keep in range(2):
        if keep == 0: A('s_cmp_eq_u32 s20, 0\ns_cbranch_scc0 P2_B1')
        else: A('P2_B1:')
        p2_exchange(A, [192, 128], keep)
        A('v_mov_b32 v11, s41')
        stamp(A, 3)
        poll(A, f'P2_y{keep}', None, 's30', 0xffff, 1)
        stamp(A, 4)
        for nb in range(8):
            A(f'buffer_load_dwordx4 {vr(32+4*nb)}, v5, s[12:15], s{46 + nb//4} offen offset:{1024*(nb%4)} sc1')
        A(f's_mov_b32 s43, {NLOG2E}')
        for pr in range(4):
            A(f's_waitcnt vmcnt({6-2*pr + pr})')
            els = [(acc2(128,keep,nb)+r, acc2(192,keep,nb)+r, 32+4*nb+r, 16+2*nb+r//2, r & 1) for nb in (2*pr, 2*pr+1) for r in range(4)]
            T = 64 + 16 * (pr & 1); X = T + 8; D = 96 + 4 * pr
            for e, (y, s, yp, xr, hi) in enumerate(els): A(f'v_add_f32 v{y}, v{y}, v{yp}')
            for e, (y, s, yp, xr, hi) in enumerate(els): A(f'v_mul_f32 v{T+e}, s43, v{y}')
            for e in range(8): A(f'v_exp_f32 v{T+e}, v{T+e}')
            for e, (y, s, yp, xr, hi) in enumerate(els):
                A(f'v_and_b32 v{X+e}, 0xffff0000, v{xr}' if hi else f'v_lshlrev_b32 v{X+e}, 16, v{xr}')
            for e in range(8): A(f'v_add_f32 v{T+e}, 1.0, v{T+e}')
            for e in range(8): A(f'v_rcp_f32 v{T+e}, v{T+e}')
            for e, (y, s, yp, xr, hi) in enumerate(els): A(f'v_mul_f32 v{y}, v{y}, v{s}')
            for e, (y, s, yp, xr, hi) in enumerate(els): A(f'v_fma_f32 v{X+e}, v{y}, v{T+e}, v{X+e}')
            for q in range(4): A(f'v_cvt_pk_bf16_f32 v{D+q}, v{X+2*q}, v{X+2*q+1}')
            A(f'v_permlane16_swap_b32 v{D}, v{D+2}\nv_permlane16_swap_b32 v{D+1}, v{D+3}')
            A(f'buffer_store_dwordx4 {vr(D)}, v8, s[64:67], s42 offen offset:{64*pr}')
        if STAMP: A('s_waitcnt vmcnt(0)')
        stamp_out(A, 2, 6)
        A('s_endpgm')
    A('P2_done:\ns_endpgm')
    A.fix()
    return A.text(), kernel_desc('p2_kernel', 256)

def main():
    k0, d0 = gen_k0(); p1, d1 = gen_p1(); p2, d2 = gen_p2()
    hdr = open('recurrent_scan__linear_kernel_hedgehog__dense_activation_mish__prompt.s.ref').read().split('\n')
    hdr = [l for l in hdr if l.startswith(';   offset') or l.startswith('; Kernarg')]
    out = hdr + ['; generated by gen/gen.py (own generator)']
    which = opt('k', '012')
    if '0' in which: out.append('; @launch kernel=ln_kernel grid=(256,1,1) block=(512,1,1) lds=0')
    if '1' in which: out.append(f'; @launch kernel=p1_kernel grid=(256,1,1) block=(512,1,1) lds={P1_LDS}')
    if '2' in which: out.append(f'; @launch kernel=p2_kernel grid=(256,1,1) block=(512,1,1) lds={P2_LDS}')
    out += ['.amdgcn_target "amdgcn-amd-amdhsa--gfx950"', '.text', k0, p1, p2, '.section .rodata,"a"', d0, d1, d2]
    print('\n'.join(out))
main()
```
